```python
import torch

def _softmax(x, axis=-1):
    return torch.softmax(x, dim=axis)
def _gelu(x):
    return torch.nn.functional.gelu(x, approximate="tanh")
def _silu(x):
    return torch.nn.functional.silu(x)
def _sigmoid(x):
    return torch.sigmoid(x)
def _layernorm(x, axis=-1, eps=1e-5):
    m = x.mean(dim=axis, keepdim=True)
    v = x.var(dim=axis, keepdim=True, unbiased=False)
    return (x - m) / torch.sqrt(v + eps)
def _scatter_add(tgt, idx, src, axis=0):
    return tgt.clone().index_add_(axis, idx, src)
def _segment_sum(src, seg, n):
    out = torch.zeros((n,) + src.shape[1:], dtype=src.dtype)
    return out.index_add_(0, seg, src)
def _pad(x, pw):
    flat = tuple(v for pair in reversed(pw) for v in pair)
    return torch.nn.functional.pad(x, flat)

kernel_name = 'gated_mix__sliding_block__sliding_local_dilated__prompt'

def setup_inputs():

    _w = (lambda a: (lambda t: t.to(torch.bfloat16) if t.is_floating_point() else t)(torch.as_tensor(a)))
    def _A_setup():
        B, S, D = 1, 2048, 512
        return {
            "x": _w((lambda *s: torch.randn(*s, dtype=torch.bfloat16) * 0.05)(B, S, D)),
            "wqkv": _w((lambda *s: torch.randn(*s, dtype=torch.bfloat16) * 1.6)(D, 3 * D)),
            "wo": _w((lambda *s: torch.randn(*s, dtype=torch.bfloat16) * 0.05)(D, D)),
        }
    _A_in = _A_setup()

    def _B_setup():
        B, S, D = 1, 2048, 512
        return {
            "x": _w((lambda *s: torch.randn(*s, dtype=torch.bfloat16) * 0.05)(B, S, D)),
            "wqkv": _w((lambda *s: torch.randn(*s, dtype=torch.bfloat16) * 1.6)(D, 3 * D)),
            "wo": _w((lambda *s: torch.randn(*s, dtype=torch.bfloat16) * 0.05)(D, D)),
        }
    _B_in = _B_setup()

    return {
        "A_x": _A_in["x"],
        "A_wqkv": _A_in["wqkv"],
        "A_wo": _A_in["wo"],
        "B_x": _B_in["x"],
        "B_wqkv": _B_in["wqkv"],
        "B_wo": _B_in["wo"],
        "gate_w": _w((lambda *s: torch.randn(*s, dtype=torch.bfloat16) * 0.05)(512) * 16.0),
    }

def reference(A_x, A_wqkv, A_wo, B_x, B_wqkv, B_wo, gate_w):
    def _A_ref(x, wqkv, wo):
        B, S, D = x.shape
        H = 32; Dh = D // H; W = 256
        qkv = (lambda x, *d: x.permute(*d))((x @ wqkv).reshape(B, S, 3, H, Dh), 2, 0, 3, 1, 4)
        q, k, v = qkv[0], qkv[1], qkv[2]
        scores = torch.einsum("bhqd,bhkd->bhqk", q, k) * (Dh ** -0.5)
        idx = torch.arange(S)
        mask = (idx[:, None] - idx[None, :] >= 0) & (idx[:, None] - idx[None, :] < W)
        scores = torch.where(mask[None, None], scores, -1e9)
        p = _softmax(scores, axis=-1)
        o = torch.einsum("bhqk,bhkd->bhqd", p, v)
        return (lambda x, *d: x.permute(*d))(o, 0, 2, 1, 3).reshape(B, S, D) @ wo

    def _B_ref(x, wqkv, wo):
        B, S, D = x.shape
        H = 32; Dh = D // H
        W, dil = 8, 2
        qkv = (lambda x, *d: x.permute(*d))((x @ wqkv).reshape(B, S, 3, H, Dh), 2, 0, 3, 1, 4)
        q, k, v = qkv[0], qkv[1], qkv[2]
        scale = Dh ** -0.5
        pos = torch.arange(S)
        off = torch.arange(W) * dil
        idx = pos[:, None] - off[None, :]
        mask = idx >= 0
        idx_c = torch.where(mask, idx, 0).reshape(-1)
        kg = k[:, :, idx_c, :].reshape(B, H, S, W, Dh)
        vg = v[:, :, idx_c, :].reshape(B, H, S, W, Dh)
        logits = torch.einsum("bhsd,bhswd->bhsw", q, kg) * scale
        logits = torch.where(mask[None, None, :, :], logits, -1e9)
        attn = _softmax(logits, axis=-1)
        o = torch.einsum("bhsw,bhswd->bhsd", attn, vg)
        return (lambda x, *d: x.permute(*d))(o, 0, 2, 1, 3).reshape(B, S, D) @ wo

    x = A_x
    g = _sigmoid((x * gate_w).sum(-1, keepdims=True))
    a = _A_ref(x, A_wqkv, A_wo)
    b = _B_ref(x, B_wqkv, B_wo)
    return g * a + (1 - g) * b
```

```python
import re

TRANS = ("v_exp_f32", "v_log_f32", "v_rcp_f32", "v_rsq_f32", "v_sqrt_f32", "v_sin_f32", "v_cos_f32")
REG_RE = re.compile(r"^(-|\|)?([vas])(?:(\d+)|\[(\d+):(\d+)\])\|?$")


def regs_of(op):
    op = op.strip()
    if op in ("vcc",):
        return {("s", 106), ("s", 107)}
    if op == "exec":
        return {("s", 126), ("s", 127)}
    if op == "m0":
        return {("s", 124)}
    m = REG_RE.match(op)
    if not m:
        return set()
    k = m.group(2)
    if m.group(3) is not None:
        return {(k, int(m.group(3)))}
    return {(k, i) for i in range(int(m.group(4)), int(m.group(5)) + 1)}


class Ins:
    __slots__ = ("text", "mn", "kind", "rd", "wr", "passes", "srcc", "srcab", "nops", "lds_dma", "wide_store", "data")

    def __init__(self, text):
        self.text = text
        t = text.split(";")[0].strip()
        self.rd, self.wr = set(), set()
        self.passes = 0
        self.srcc, self.srcab, self.data = set(), set(), set()
        self.nops = 1
        self.lds_dma = False
        self.wide_store = False
        if t.endswith(":") or t.startswith(".") or not t:
            self.mn, self.kind, self.nops = t, "label", 0
            return
        parts = t.split(None, 1)
        mn = self.mn = parts[0]
        rest = parts[1] if len(parts) > 1 else ""
        ops = [o.strip() for o in rest.split(",")] if rest else []
        if ops:
            tail = ops[-1].split()
            ops[-1] = tail[0] if tail else ""
            mods = tail[1:]
        else:
            mods = []
        R = [regs_of(o) for o in ops]
        if mn.startswith("v_mfma"):
            self.kind = "mfma"
            self.passes = 8 if "32x32" in mn else 4
            self.wr = R[0]
            self.srcab = R[1] | R[2]
            self.srcc = R[3]
            self.rd = self.srcab | self.srcc
        elif mn.startswith("v_"):
            self.kind = "valu"
            if mn.startswith("v_permlane"):
                self.wr = R[0] | R[1]
                self.rd = R[0] | R[1]
            elif mn.startswith("v_cmp"):
                self.wr = R[0]
                self.rd = set().union(*R[1:])
            else:
                self.wr = R[0]
                self.rd = set().union(*R[1:]) if len(R) > 1 else set()
                if mn.startswith(("v_fmac", "v_dot2c")):
                    self.rd |= R[0]
        elif mn.startswith("ds_"):
            self.kind = "ds"
            if mn.startswith("ds_read"):
                self.wr = R[0]
                self.rd = R[1]
            else:
                self.rd = set().union(*R)
        elif mn.startswith("buffer_"):
            self.kind = "vmem"
            if "lds" in mods:
                self.lds_dma = True
                self.rd = set().union(*R) | {("s", 124)}
            elif mn.startswith("buffer_load"):
                self.wr = R[0]
                self.rd = set().union(*R[1:])
            elif mn.startswith(("buffer_wbl2", "buffer_inv")):
                pass
            else:
                self.rd = set().union(*R)
                self.data = R[0]
                self.wide_store = len(R[0]) >= 3
        elif mn.startswith(("s_load", "s_buffer_load", "s_memtime", "s_memrealtime")):
            self.kind = "smem"
            self.wr = R[0]
            self.rd = set().union(*R[1:]) if len(R) > 1 else set()
        elif mn == "s_nop":
            self.kind = "nop"
            self.nops = int(ops[0], 0) + 1
        elif mn.startswith(("s_cbranch", "s_branch", "s_endpgm")):
            self.kind = "branch"
        elif mn.startswith(("s_waitcnt", "s_barrier", "s_sleep", "s_setprio")):
            self.kind = "sync"
        elif mn.startswith("s_cmp") or mn.startswith("s_bitcmp"):
            self.kind = "salu"
            self.rd = set().union(*R)
        elif mn.startswith("s_"):
            self.kind = "salu"
            self.wr = R[0]
            self.rd = set().union(*R[1:]) if len(R) > 1 else set()
        else:
            raise ValueError("unknown instruction: " + text)


def need_states(p, c):
    n = 0
    vec = lambda s: {r for r in s if r[0] in "va"}
    sca = lambda s: {r for r in s if r[0] == "s"}
    if p.kind == "valu":
        pw = vec(p.wr)
        if c.kind == "mfma" and pw & c.rd:
            n = max(n, 2)
        if c.kind == "valu":
            if c.mn.startswith("v_permlane") and pw & c.rd:
                n = max(n, 2)
            if c.mn.startswith(("v_readfirstlane", "v_readlane")) and pw & c.rd:
                n = max(n, 1)
            if p.mn.startswith(TRANS) and not c.mn.startswith(TRANS) and pw & c.rd:
                n = max(n, 1)
            if sca(p.wr) & c.rd:
                n = max(n, 2)
        if c.kind == "vmem" and sca(p.wr) & c.rd:
            n = max(n, 5)
        if c.kind in ("salu", "smem") and sca(p.wr) & c.rd:
            n = max(n, 2)
    elif p.kind == "mfma":
        big = p.passes == 8
        if c.kind == "mfma":
            if p.wr & c.srcab:
                n = max(n, 12 if big else 8)
            if p.wr & c.srcc and not (p.wr == c.srcc and p.passes == c.passes):
                n = max(n, 10 if big else 6)
            if p.wr & c.wr and not (p.wr == c.wr and p.passes == c.passes):
                n = max(n, 10 if big else 6)
        elif c.kind in ("valu", "ds", "vmem"):
            if p.wr & (c.rd | c.wr):
                n = max(n, 12 if big else 8)
            if c.kind == "valu" and p.srcc & c.wr:
                n = max(n, 7 if big else 3)
    elif p.kind == "salu":
        if ("s", 124) in p.wr and c.lds_dma:
            n = max(n, 1)
    elif p.kind == "vmem" and p.wide_store:
        if p.data & c.wr:
            n = max(n, 2)
    return n


class Asm:
    def __init__(self):
        self.lines = []
        self.vm = 0
        self.lg = 0
        self.vm_done = 0
        self.lg_done = 0
        self.smem_open = False

    def e(self, text):
        tok = None
        for t in text.strip().split("\n"):
            t = t.strip()
            if not t:
                continue
            self.lines.append(t)
            mn = t.split()[0]
            if mn.startswith("buffer_"):
                self.vm += 1
                tok = ("vm", self.vm)
            elif mn.startswith("ds_"):
                self.lg += 1
                tok = ("lg", self.lg)
            elif mn.startswith(("s_load", "s_buffer_load", "s_memtime", "s_memrealtime")):
                self.smem_open = True
                tok = ("sm", 0)
        return tok

    def wait(self, vm=None, lg=None, force=False):
        parts = []
        if vm is not None:
            k = self.vm if vm == "all" else vm[1]
            if k > self.vm_done or force:
                n = self.vm - k
                assert n <= 63, f"vmcnt overflow {n}"
                parts.append(f"vmcnt({n})")
                self.vm_done = max(self.vm_done, k)
        if lg is not None:
            if lg == "all" or lg[0] == "sm" or self.smem_open:
                if self.lg > self.lg_done or self.smem_open or force:
                    parts.append("lgkmcnt(0)")
                self.lg_done = self.lg
                self.smem_open = False
            elif lg[1] > self.lg_done:
                n = self.lg - lg[1]
                if n > 15:
                    n = 15
                parts.append(f"lgkmcnt({n})")
                self.lg_done = self.lg - n
        if parts:
            self.lines.append("s_waitcnt " + " ".join(parts))

    def outstanding_vm(self):
        return self.vm - self.vm_done

    def finish(self):
        out, added = [], 0
        for t in self.lines:
            c = Ins(t)
            if c.kind != "label":
                dist, need = 0, 0
                for p in reversed(out):
                    if dist >= 12:
                        break
                    need = max(need, need_states(p, c) - dist)
                    dist += p.nops
                if need > 0:
                    out.append(Ins(f"s_nop {need - 1}"))
                    added += need
            out.append(c)
        return "\n".join(("" if i.kind == "label" else "    ") + i.text for i in out) + "\n", added


def weave(primary, fill, per_gap=2, start=0):
    out, n, m = [], len(primary), len(fill)
    slots = max(n - start, 1)
    used = 0
    for i, p in enumerate(primary):
        out.append(p)
        if i >= start:
            want = min(m, -(-m * (i - start + 1) // slots))
            want = min(max(want, used), used + max(per_gap, -(-m // slots)))
            while used < want:
                out.append(fill[used])
                used += 1
    out.extend(fill[used:])
    return out
```

```python
import sys, argparse
from asmlib import Asm, weave

NAME = "gated_mix__sliding_block__sliding_local_dilated__prompt"
C_SCALE = 0x3EB8AA3B
NLOG2E = 0xBFB8AA3B
NINF = 0xFF800000
ONES = 0x3F803F80
L_LO, L_HI = 0x17800000, 0x67800000
SPIN_MAX = 200000

WS_KV, WS_OA, WS_OB = 0, 4 << 20, 6 << 20
WS_F1, WS_FB, WS_FA = 8 << 20, (8 << 20) + (256 << 10), (8 << 20) + (512 << 10)
WS_AN = (8 << 20) + (768 << 10)
WS_STAMP = 16 << 20
WS_SIZE = 32 << 20
OOB = 0x7FFF0000

L_X, L_RING, RING_SZ, L_XH, L_G = 0, 65536, 65536, 131072, 147456
L_WOB, L_WOA = 0, 65536
LDS_BYTES = 151552


class Regs:
    def __init__(self, kind, start, limit):
        self.kind, self.next, self.limit = kind, start, limit
        self.high = start

    def get(self, n=1, align=1):
        self.next = -(-self.next // align) * align
        r = self.next
        self.next += n
        self.high = max(self.high, self.next)
        assert self.next <= self.limit, f"out of {self.kind} registers"
        return r


def v(r, n=1):
    return f"v{r}" if n == 1 else f"v[{r}:{r + n - 1}]"


def a(r, n=1):
    return f"a{r}" if n == 1 else f"a[{r}:{r + n - 1}]"


def s(r, n=1):
    return f"s{r}" if n == 1 else f"s[{r}:{r + n - 1}]"


class Item:
    def __init__(self, name, units, nbytes, lds=None):
        self.name, self.units, self.nbytes, self.lds = name, units, nbytes, lds
        self.issued = 0
        self.tok = None
        self.freed = lds is None
        self.prev = []
        self.hold = False


class Pipe:
    def __init__(self, A, look):
        self.A, self.items, self.pos, self.look = A, [], 0, look
        self.by = {}
        self.waited = -1
        self.pending_free = []

    def add(self, it):
        if it.lds:
            lo, hi = it.lds
            it.prev = [o for o in self.items if o.lds and o.lds[0] < hi and lo < o.lds[1]]
        self.items.append(it)
        self.by[it.name] = it
        return it

    def can(self, it):
        return not it.hold and all(o.freed for o in it.prev)

    def take(self, maxunits, look=None):
        look = self.look if look is None else look
        out = []
        while maxunits > 0 and self.pos < len(self.items):
            it = self.items[self.pos]
            ahead = sum(o.nbytes for o in self.items[self.waited + 1:self.pos + 1])
            if not self.can(it) or ahead > look:
                break
            u = it.units[it.issued]
            it.issued += 1
            last = it.issued == len(it.units)
            for t in u[:-1]:
                out.append(t)
            out.append((u[-1], it if last else None))
            if last:
                self.pos += 1
            maxunits -= 1
        return out

    def force(self, name):
        idx = self.items.index(self.by[name])
        out = []
        while self.pos <= idx:
            assert self.can(self.items[self.pos]), f"cannot issue {self.items[self.pos].name} (needed for {name})"
            out += self.take(1, look=1 << 30)
        return out

    def emit(self, lst):
        for x in lst:
            if isinstance(x, tuple):
                tok = self.A.e(x[0])
                if x[1] is not None:
                    x[1].tok = tok
            else:
                self.A.e(x)

    def top(self, names, barrier=True):
        tok = None
        for n in names:
            self.emit(self.force(n))
            t = self.by[n].tok
            tok = t if tok is None or t[1] > tok[1] else tok
            self.waited = max(self.waited, self.items.index(self.by[n]))
        self.A.wait(vm=tok, lg="all")
        if barrier:
            self.A.e("s_barrier")
            for it in self.pending_free:
                it.freed = True
            self.pending_free = []

    def read(self, *names):
        self.pending_free += [self.by[n] for n in names]


def generate(opt):
    A = Asm()
    e = A.e
    S = Regs("s", 4, 102)
    V = Regs("v", 1, 256)
    srd = {n: S.get(4, 4) for n in ("X", "XH", "KV", "Q", "B", "WOA", "WOB", "WS", "OUT", "G", "DBG")}
    R = lambda n: s(srd[n], 4)
    sNON = S.get(2, 2)
    sP = S.get(8, 4)
    sMK = S.get(2, 2)
    sMV = S.get(2, 2)
    sHG, sJ, sRB, sW, sHD, sHB, sCG, sT, sT2, sOFF, sLOC, sCNT = (S.get() for _ in range(12))
    sTI = S.get(4)
    sTA = S.get(4)
    sTB = S.get(4)
    sTC = S.get(4)
    sM1, sM2, sM3, sM4 = (S.get() for _ in range(4))
    sKVO, sF1, sOAW, sOBW = (S.get() for _ in range(4))
    stamps = []

    def stamp(tag):
        if opt.stamp:
            e(f"s_memrealtime {s(sP + 6, 2)}")
            A.wait(lg="all")
            e(f"v_writelane_b32 {v(vSTAMP)}, {s(sP + 6)}, {len(stamps)}")
            stamps.append(tag)

    vL, vT0, vT1, vT2, vT3 = (V.get() for _ in range(5))
    vX0, vX1, vWS, vH0, vH1, vGS = (V.get() for _ in range(6))
    assert vX0 % 2 == 0
    vRKV, vRQ, vRB, vRX0, vRX1, vRH0, vRH1, vRG = (V.get() for _ in range(8))
    vL16, vVS, vOA, vOB, vOUT, vNINF, vPRE = (V.get() for _ in range(7))
    vOS = V.get(4)
    vRO = V.get(4)
    vNON = V.get(2, 2)
    vAN = V.get(2, 2)
    vGB = V.get(4)
    vGA = V.get(2)
    vDUM, vSTAMP = V.get(), V.get()
    vMD, vMF, vMB = V.get(16, 4), V.get(16, 4), V.get(16, 4)
    vKO = V.get(8, 4)
    vVO = V.get(16, 4)
    vQA = V.get(8, 4)
    base = V.get(0, 4)

    e(f"s_cmp_ge_u32 s2, 256\ns_cbranch_scc1 L_end")
    if opt.stamp:
        e(f"s_memrealtime {s(sNON, 2)}")
    for off, n in ((0, "X"), (8, "KV"), (48, "G"), (0, "XH"), (8, "Q"), (32, "B"), (16, "WOA"), (40, "WOB"),
                   (56, "OUT"), (64, "DBG"), (72, "WS")):
        e(f"s_load_dwordx2 {s(srd[n], 2)}, s[0:1], {off}")
    e(f"v_lshrrev_b32 {v(vT0)}, 6, v0\nv_and_b32 {v(vL)}, 63, v0")
    if opt.map == "row":
        e(f"""s_lshr_b32 {s(sT)}, s2, 3
        s_and_b32 {s(sHG)}, {s(sT)}, 7
        s_lshr_b32 {s(sJ)}, {s(sT)}, 3
        s_and_b32 {s(sT2)}, s2, 7
        s_lshl_b32 {s(sT2)}, {s(sT2)}, 2
        s_add_u32 {s(sRB)}, {s(sT2)}, {s(sJ)}""")
    else:
        e(f"""s_lshr_b32 {s(sT)}, s2, 3
        s_and_b32 {s(sHG)}, {s(sT)}, 3
        s_and_b32 {s(sT2)}, s2, 1
        s_lshl_b32 {s(sT2)}, {s(sT2)}, 2
        s_add_u32 {s(sHG)}, {s(sHG)}, {s(sT2)}
        s_lshr_b32 {s(sRB)}, {s(sT)}, 2
        s_lshr_b32 {s(sJ)}, {s(sRB)}, 1
        s_bfe_u32 {s(sT2)}, s2, 0x20001
        s_lshl_b32 {s(sT2)}, {s(sT2)}, 3
        s_add_u32 {s(sRB)}, {s(sRB)}, {s(sT2)}""")
    e(f"v_readfirstlane_b32 {s(sW)}, {v(vT0)}")
    e(f"""v_lshrrev_b32 {v(vT1)}, 3, {v(vL)}
    v_and_b32 {v(vT2)}, 7, {v(vL)}
    v_bfe_u32 {v(vT3)}, {v(vL)}, 4, 1
    v_and_b32 {v(vWS)}, 1, {v(vT0)}
    v_lshl_or_b32 {v(vT3)}, {v(vWS)}, 1, {v(vT3)}
    v_lshlrev_b32 {v(vT3)}, 1, {v(vT3)}
    v_xor_b32 {v(vT3)}, {v(vT3)}, {v(vT2)}
    v_lshl_add_u32 {v(vWS)}, {v(vT0)}, 3, {v(vT1)}
    v_mul_u32_u24 {v(vWS)}, 3072, {v(vWS)}
    v_lshl_add_u32 {v(vWS)}, {v(vT3)}, 4, {v(vWS)}""")
    for u in range(4):
        e(f"s_add_u32 {s(sTI + u)}, {s(sJ)}, {u}\ns_and_b32 {s(sTI + u)}, {s(sTI + u)}, 3\n"
          f"s_mul_i32 {s(sTA + u)}, {s(sTI + u)}, {4 * 32 * 3072}")
    e(f"""s_lshl_b32 {s(sM1)}, {s(sW)}, 10
    s_lshl_b32 {s(sM2)}, {s(sW)}, 11
    s_mul_i32 {s(sM3)}, {s(sW)}, 3072
    s_lshl_b32 {s(sM4)}, {s(sW)}, 12
    s_xor_b32 {s(sHB)}, {s(sHG)}, {opt.xb}
    s_xor_b32 {s(sCG)}, {s(sHG)}, {opt.xo}""")
    e(f"""v_lshrrev_b32 {v(vX1)}, 1, {v(vT0)}
    v_lshlrev_b32 {v(vX1)}, 5, {v(vX1)}
    v_and_or_b32 {v(vX1)}, {v(vT0)}, 1, {v(vX1)}
    v_lshl_add_u32 {v(vX1)}, {v(vT1)}, 1, {v(vX1)}
    v_lshrrev_b32 {v(vT3)}, 4, {v(vL)}
    v_xor_b32 {v(vT3)}, {v(vT3)}, {v(vT2)}
    v_lshlrev_b32 {v(vT3)}, 4, {v(vT3)}
    v_lshl_add_u32 {v(vX0)}, {v(vX1)}, 10, {v(vT3)}
    v_lshl_add_u32 {v(vH0)}, {v(vT1)}, 10, {v(vT3)}
    v_xor_b32 {v(vX1)}, 64, {v(vX0)}
    v_add_u32 {v(vX1)}, {16384 - 1024}, {v(vX1)}
    v_xor_b32 {v(vH1)}, 64, {v(vH0)}
    v_add_u32 {v(vH1)}, {8192 - 1024}, {v(vH1)}
    v_lshl_add_u32 {v(vPRE)}, {v(vT0)}, 4, {v(vL)}
    v_lshlrev_b32 {v(vPRE)}, 10, {v(vPRE)}
    v_lshlrev_b32 {v(vL16)}, 4, {v(vL)}""")
    e(f"""s_lshl_b32 {s(sT)}, {s(sJ)}, 8
    v_add_u32 {v(vGS)}, {s(sT)}, {v(vL16)}
    v_and_b32 {v(vGS)}, 1023, {v(vGS)}""")
    if opt.stamp:
        e(f"v_mov_b32 {v(vSTAMP)}, 0")
    A.wait(lg="all")
    if opt.stamp:
        e(f"v_writelane_b32 {v(vSTAMP)}, {s(sNON)}, 0")
        stamps.append("start")

    def mksrd(n, off_reg, size, const=0):
        b = srd[n]
        if off_reg is not None:
            if const:
                e(f"s_add_u32 {s(sT2)}, {off_reg}, {const}")
                off_reg = s(sT2)
            e(f"s_add_u32 {s(b)}, {s(b)}, {off_reg}\ns_addc_u32 {s(b + 1)}, {s(b + 1)}, 0\n"
              f"s_sub_u32 {s(b + 2)}, {size}, {off_reg}")
        else:
            e(f"s_mov_b32 {s(b + 2)}, {size}")
        e(f"s_mov_b32 {s(b + 3)}, 0x20000")

    e(f"s_lshl_b32 {s(sOFF)}, {s(sRB)}, 16")
    mksrd("X", s(sOFF), 2 << 20)
    e(f"s_lshl_b32 {s(sT)}, {s(sHG)}, 7")
    mksrd("KV", s(sT), 3 << 19, 1024)

    P = Pipe(A, opt.look)
    ring = [0]

    def ring_alloc(n):
        if ring[0] + n > RING_SZ:
            ring[0] = 0
        o = ring[0]
        ring[0] += n
        return o

    slot = {}

    def w_item(name, st, sr, nseg, mreg):
        o = ring_alloc(nseg * 4096)
        slot[(name, st)] = o
        units = []
        for g in range(nseg):
            u = []
            if g == 0:
                u.append(f"s_add_u32 {s(sOFF)}, {s(sTA + st // 4)}, {(st % 4) * 32 * 3072}")
                u.append(f"s_add_u32 m0, {s(mreg)}, {L_RING + o}")
            u.append(f"buffer_load_dwordx4 {v(vWS)}, {R(sr)}, {s(sOFF)} offen offset:{g * 1024} lds")
            units.append(u)
        return Item(f"{name}{st}", units, nseg * 4096, (L_RING + o, L_RING + o + nseg * 4096))

    def x_item(c):
        u0 = [f"s_lshl_b32 {s(sOFF)}, {s(sTI + c // 2)}, 8"]
        if c & 1:
            u0.append(f"s_add_u32 {s(sOFF)}, {s(sOFF)}, 128")
        u0 += [f"s_add_u32 m0, {s(sM2)}, {L_X + c * 8192}",
               f"buffer_load_dwordx4 {v(vX0)}, {R('X')}, {s(sOFF)} offen lds"]
        u1 = [f"buffer_load_dwordx4 {v(vX1)}, {R('X')}, {s(sOFF)} offen offset:1024 lds"]
        return Item(f"X{c}", [u0, u1], 8192, (L_X + c * 8192, L_X + (c + 1) * 8192))

    nx = 1 if opt.map == "row" else 2
    touch = []
    for q in range(nx):
        sh = f"s_lshl_b32 {s(sOFF)}, {s(sHG)}, 7" if nx == 1 else \
            f"s_and_b32 {s(sOFF)}, {s(sHG)}, 3\ns_lshl_b32 {s(sOFF)}, {s(sOFF)}, 8"
        touch.append([sh, "s_mov_b64 exec, 0xffff\n"
                      f"buffer_load_dword {v(vDUM)}, {v(vPRE)}, {R('X')}, {s(sOFF)} offen offset:{q * 128}\n"
                      "s_mov_b64 exec, -1"])
    P.add(Item("XT", touch, 8192 * nx))
    for st in range(4):
        P.add(w_item("KV", st, "KV", 2, sM2))
    P.add(Item("G", [[f"s_add_u32 m0, {s(sM1)}, {L_G}", f"buffer_load_dwordx4 {v(vGS)}, {R('G')}, 0 offen lds"]],
               1024, (L_G, L_G + 4096)))
    for c in range(8):
        P.add(x_item(c))
        for st in (2 * c, 2 * c + 1):
            if st >= 4:
                P.add(w_item("KV", st, "KV", 2, sM2))
    for st in range(16):
        P.add(w_item("Q", st, "Q", 1, sM1))
    xh = []
    for q in range(2):
        xh.append([f"s_add_u32 {s(sOFF)}, {s(sW)}, {s(sJ)}", f"s_and_b32 {s(sOFF)}, {s(sOFF)}, 3",
                   f"s_lshl_b32 {s(sOFF)}, {s(sOFF)}, 8", f"s_add_u32 {s(sOFF)}, {s(sOFF)}, {q * 128}",
                   f"s_add_u32 m0, {s(sM4)}, {L_XH + q * 2048}",
                   f"buffer_load_dwordx4 {v(vH0)}, {R('XH')}, {s(sOFF)} offen lds"])
        xh.append([f"buffer_load_dwordx4 {v(vH1)}, {R('XH')}, {s(sOFF)} offen offset:1024 lds"])
    P.add(Item("XH", xh, 16384, (L_XH, L_XH + 16384)))
    P.add(Item("BT", [[f"s_lshl_b32 {s(sOFF)}, {s(sRB)}, 8", "s_mov_b64 exec, 15\n"
                       f"buffer_load_dword {v(vDUM)}, {v(vPRE)}, {R('WS')}, {s(sOFF)} offen\ns_mov_b64 exec, -1"]], 512))
    P.by["BT"].hold = True
    for st in range(16):
        P.add(w_item("B", st, "B", 3, sM3))
    P.add(Item("AN", [[f"s_lshl_b32 {s(sOFF)}, {s(sRB)}, 7", f"s_add_u32 {s(sOFF)}, {s(sOFF)}, {WS_AN}",
                       "s_mov_b64 exec, 0xff\n"
                       f"buffer_load_dwordx2 {v(vX0, 2)}, {v(vGS)}, {R('WS')}, {s(sOFF)} offen sc1\n"
                       "s_mov_b64 exec, -1"]], 128)).hold = True
    aK = lambda ht: 12 * (7 - ht)
    aV = lambda ht, p: 12 * (7 - ht) + 4 + 4 * p
    for ht in range(7, -1, -1):
        q, b = ht >> 1, ht & 1
        it = P.add(Item(f"H{ht}", [
            [f"buffer_load_dwordx4 {a(aK(ht), 4)}, {v(vL16)}, {R('WS')}, {s(sTB + q)} offen offset:{b * 2048} sc1"],
            [f"s_mov_b64 exec, {s(sMV, 2)}\n"
             f"buffer_load_dwordx4 {a(aV(ht, 0), 4)}, {v(vVS)}, {R('WS')}, {s(sTB + q)} offen offset:{b * 2048 + 1024} sc1\n"
             f"buffer_load_dwordx4 {a(aV(ht, 1), 4)}, {v(vVS)}, {R('WS')}, {s(sTB + q)} offen offset:{b * 2048 + 1536} sc1\n"
             "s_mov_b64 exec, -1"]], 8192))
        it.hold = True

    def wo_item(name, sr, lbase, u):
        units = []
        for q in range(4):
            x = [f"s_add_u32 m0, {s(sM4)}, {lbase + u * 16384}"] if q == 0 else []
            x.append(f"buffer_load_dwordx4 {v(vOS + q)}, {R(sr)}, {s(sTA + u)} offen offset:{q * 1024} lds")
            units.append(x)
        return Item(f"{name}{u}", units, 16384, (lbase + u * 16384, lbase + (u + 1) * 16384))

    P.emit(P.force("KV3"))

    mksrd("G", None, 1024)
    P.emit(P.force("G"))
    e(f"""s_getpc_b64 {s(sP, 2)}
    L_pc:
    s_sub_u32 {s(sP)}, {s(sP)}, L_pc-{NAME}_kernel
    s_subb_u32 {s(sP + 1)}, {s(sP + 1)}, 0
    s_mov_b32 {s(sP + 2)}, L_codeend-{NAME}_kernel
    s_mov_b32 {s(sP + 3)}, 0x20000
    s_lshr_b32 {s(sT)}, s2, 3
    s_lshl_b32 {s(sT)}, {s(sT)}, 2
    s_add_u32 {s(sT)}, {s(sT)}, {s(sW)}
    s_mul_i32 {s(sT)}, {s(sT)}, {opt.codelines * 128}
    v_lshlrev_b32 {v(vT2)}, 7, {v(vL)}
    s_mov_b64 exec, {(1 << opt.codelines) - 1}
    buffer_load_dword {v(vDUM)}, {v(vT2)}, {s(sP, 4)}, {s(sT)} offen
    s_mov_b64 exec, -1""")
    P.emit(P.take(4, look=1 << 30))
    e(f"s_lshl_b32 {s(sT)}, {s(sHG)}, 7")
    mksrd("Q", s(sT), 3 << 19)
    e(f"s_lshl_b32 {s(sT)}, {s(sHB)}, 7")
    mksrd("B", s(sT), 3 << 19)
    e(f"s_lshl_b32 {s(sT)}, {s(sCG)}, 7")
    mksrd("WOA", s(sT), 1 << 19)
    mksrd("WOB", s(sT), 1 << 19)
    e(f"s_lshl_b32 {s(sOFF)}, {s(sRB)}, 16\ns_add_u32 {s(sT)}, {s(sT)}, {s(sOFF)}")
    mksrd("OUT", s(sT), 2 << 20)
    e(f"s_sub_u32 {s(sT)}, {s(sOFF)}, 16384\ns_max_i32 {s(sT)}, {s(sT)}, 0")
    mksrd("XH", s(sT), 2 << 20)
    mksrd("WS", None, WS_SIZE)
    mksrd("DBG", None, 256)
    vm0, sm0 = A.vm, A.smem_open
    e(f"""s_or_b32 {s(sT)}, {s(sW)}, {s(sHG)}
    s_cbranch_scc1 L_notag
    s_memrealtime {s(sP, 2)}
    v_mov_b32 {v(vT2)}, 0
    v_mov_b32 {v(base + 6)}, 0
    v_mov_b32 {v(base + 7)}, 0
    s_waitcnt lgkmcnt(0)
    v_mov_b32 {v(base + 4)}, {s(sP)}
    v_mov_b32 {v(base + 5)}, {s(sP + 1)}
    s_mov_b64 exec, 1
    buffer_atomic_cmpswap_x2 {v(base + 4, 4)}, {v(vT2)}, {R('DBG')}, 0 offen sc1
    s_mov_b64 exec, -1
    L_notag:""")
    A.vm, A.smem_open = vm0, sm0

    e(f"""s_lshl_b32 {s(sHD)}, {s(sHG)}, 2
    s_add_u32 {s(sHD)}, {s(sHD)}, {s(sW)}
    s_lshl_b32 {s(sT)}, {s(sRB)}, 5
    s_add_u32 {s(sT)}, {s(sT)}, {s(sHD)}
    s_lshl_b32 {s(sKVO)}, {s(sT)}, 12
    s_lshl_b32 {s(sF1)}, {s(sT)}, 7
    s_add_u32 {s(sF1)}, {s(sF1)}, {WS_F1}
    s_mov_b32 {s(sMV)}, 0xffff
    s_mov_b32 {s(sMV + 1)}, 0xffff""")
    for q in range(4):
        e(f"""s_sub_u32 {s(sTB + q)}, {s(sKVO)}, {(4 - q) * 131072}
        s_cmp_ge_u32 {s(sRB)}, {4 - q}
        s_cselect_b32 {s(sTB + q)}, {s(sTB + q)}, {OOB}
        s_cselect_b32 {s(sTC + q)}, {ONES}, 0""")
    e(f"""s_lshl_b32 {s(sT)}, {s(sRB)}, 16
    s_lshr_b32 {s(sT2)}, {s(sHD)}, 1
    s_lshl_b32 {s(sT2)}, {s(sT2)}, 10
    s_add_u32 {s(sOAW)}, {s(sT)}, {s(sT2)}
    s_add_u32 {s(sOAW)}, {s(sOAW)}, {WS_OA}
    s_lshl_b32 {s(sT2)}, {s(sHB)}, 2
    s_add_u32 {s(sHB)}, {s(sT2)}, {s(sW)}
    s_lshr_b32 {s(sT2)}, {s(sHB)}, 1
    s_lshl_b32 {s(sT2)}, {s(sT2)}, 10
    s_add_u32 {s(sOBW)}, {s(sT)}, {s(sT2)}
    s_add_u32 {s(sOBW)}, {s(sOBW)}, {WS_OB}""")
    g_, r_, c_, n_ = base, base + 1, base + 2, base + 3
    e(f"""v_lshrrev_b32 {v(g_)}, 4, {v(vL)}
    v_bfe_u32 {v(r_)}, {v(vL)}, 2, 2
    v_and_b32 {v(c_)}, 3, {v(vL)}
    v_and_b32 {v(n_)}, 15, {v(vL)}
    v_bfe_u32 {v(vT1)}, {v(vL)}, 3, 2
    v_xor_b32 {v(vT2)}, {v(vT1)}, {v(vT0)}
    v_lshlrev_b32 {v(vT2)}, 5, {v(vT2)}
    v_lshl_add_u32 {v(vT2)}, {v(c_)}, 3, {v(vT2)}
    v_lshl_add_u32 {v(vT2)}, {v(r_)}, 7, {v(vT2)}
    v_add_u32 {v(vT2)}, {L_RING}, {v(vT2)}
    v_lshl_add_u32 {v(vRQ)}, {v(g_)}, 10, {v(vT2)}
    v_lshl_add_u32 {v(vRKV)}, {v(g_)}, 11, {v(vT2)}
    v_lshl_add_u32 {v(vRB)}, {v(g_)}, 10, {v(vRKV)}
    v_lshrrev_b32 {v(vT2)}, 1, {v(n_)}
    v_xor_b32 {v(vT2)}, {v(vT2)}, {v(g_)}
    v_lshlrev_b32 {v(vT2)}, 4, {v(vT2)}
    v_lshl_add_u32 {v(vRX0)}, {v(n_)}, 7, {v(vT2)}
    v_xor_b32 {v(vRX1)}, 64, {v(vRX0)}
    v_add_u32 {v(vRH0)}, {L_XH}, {v(vRX0)}
    v_add_u32 {v(vRH1)}, {L_XH}, {v(vRX1)}
    v_lshlrev_b32 {v(vRG)}, 4, {v(g_)}
    v_lshl_add_u32 {v(vRG)}, {v(vT0)}, 10, {v(vRG)}
    v_add_u32 {v(vRG)}, {L_G}, {v(vRG)}""")
    e(f"""v_lshrrev_b32 {v(vT1)}, 3, {v(vL)}
    v_lshlrev_b32 {v(vT1)}, 12, {v(vT1)}
    v_lshl_add_u32 {v(vT1)}, {v(vT0)}, 15, {v(vT1)}
    v_and_b32 {v(vT2)}, 7, {v(vL)}""")
    for q in range(4):
        e(f"v_xor_b32 {v(vT3)}, {2 * q}, {v(vT2)}\nv_lshl_add_u32 {v(vOS + q)}, {v(vT3)}, 4, {v(vT1)}")
    e(f"""v_lshrrev_b32 {v(vT1)}, 1, {v(g_)}
    v_lshlrev_b32 {v(vT1)}, 2, {v(vT1)}
    v_and_or_b32 {v(vT1)}, {v(g_)}, 1, {v(vT1)}
    v_lshlrev_b32 {v(vT1)}, 7, {v(vT1)}
    v_lshl_add_u32 {v(vT1)}, {v(r_)}, 10, {v(vT1)}
    v_lshl_add_u32 {v(vT1)}, {v(c_)}, 3, {v(vT1)}""")
    for q in range(4):
        e(f"v_xor_b32 {v(vT3)}, {q}, {v(r_)}\nv_lshl_add_u32 {v(vRO + q)}, {v(vT3)}, 5, {v(vT1)}")
    e(f"""v_lshrrev_b32 {v(vT1)}, 5, {v(vL)}
    v_lshlrev_b32 {v(vT2)}, 4, {v(n_)}
    v_lshl_add_u32 {v(vVS)}, {v(vT1)}, 8, {v(vT2)}
    v_and_b32 {v(vT3)}, 1, {v(vT0)}
    v_lshl_add_u32 {v(vT2)}, {v(vT3)}, 9, {v(vT2)}
    v_and_b32 {v(vOUT)}, 1, {v(g_)}
    v_lshl_add_u32 {v(vOA)}, {v(vT1)}, 8, {v(vT2)}
    v_lshl_add_u32 {v(vOA)}, {v(vOUT)}, 14, {v(vOA)}
    v_lshl_add_u32 {v(vOB)}, {v(vOUT)}, 8, {v(vT2)}
    v_lshl_add_u32 {v(vOB)}, {v(vT1)}, 14, {v(vOB)}
    v_lshlrev_b32 {v(vOUT)}, 5, {v(vOUT)}
    v_lshl_add_u32 {v(vOUT)}, {v(vT1)}, 4, {v(vOUT)}
    v_lshl_add_u32 {v(vT3)}, {v(n_)}, 1, {v(vT3)}
    v_lshrrev_b32 {v(vT2)}, 1, {v(vT0)}
    v_lshl_add_u32 {v(vT3)}, {v(vT2)}, 5, {v(vT3)}
    v_lshl_add_u32 {v(vOUT)}, {v(vT3)}, 10, {v(vOUT)}
    v_mov_b32 {v(vNINF)}, {NINF}""")
    e(f"""v_and_b32 {v(vT2)}, 1, {v(g_)}
    v_lshl_add_u32 {v(vT2)}, {v(n_)}, 1, {v(vT2)}
    v_lshlrev_b32 {v(vT1)}, 3, {v(vT1)}
    v_sub_u32 {v(vT2)}, {v(vT2)}, {v(vT1)}""")
    for r in range(16):
        cr = 16 * ((r >> 2) & 1) + 2 * (r & 3) + (r >> 3)
        e(f"""v_cmp_le_i32 {s(sMK, 2)}, {cr}, {v(vT2)}
        v_cndmask_b32 {v(vMD + r)}, {v(vNINF)}, 0, {s(sMK, 2)}
        v_cndmask_b32 {v(vMF + r)}, 0, {v(vNINF)}, {s(sMK, 2)}""")
    e(f"""v_lshlrev_b32 {v(vT1)}, 2, {v(g_)}
    v_sub_u32 {v(vT2)}, {v(n_)}, {v(vT1)}
    v_add_u32 {v(vT3)}, {v(vT2)}, {v(n_)}
    s_cmp_eq_u32 {s(sRB)}, 0
    s_cselect_b32 {s(sT)}, 64, 0
    v_add_u32 {v(vT3)}, {s(sT)}, {v(vT3)}""")
    for r in range(4):
        e(f"""v_subrev_u32 {v(vT1)}, {r}, {v(vT2)}
        v_cmp_ge_u32 {s(sMK, 2)}, 7, {v(vT1)}
        v_cndmask_b32 {v(vMB + r)}, {v(vNINF)}, 0, {s(sMK, 2)}
        v_cmp_ge_i32 {s(sMK, 2)}, -9, {v(vT1)}
        v_cndmask_b32 {v(vMB + 4 + r)}, {v(vNINF)}, 0, {s(sMK, 2)}""")
        p = r & 1
        e(f"""v_cmp_ge_i32 {s(sMK, 2)}, {r - p - 2}, {v(vT3)}
        v_cndmask_b32 {v(vMB + 8 + 4 * p + r)}, {v(vNINF)}, 0, {s(sMK, 2)}
        v_mov_b32 {v(vMB + 8 + 4 * (1 - p) + r)}, {v(vNINF)}""")
    e(f"""v_and_b32 {v(vT1)}, 1, {v(vL)}
    v_lshlrev_b32 {v(vT1)}, 7, {v(vT1)}
    v_bfe_u32 {v(vT2)}, {v(vL)}, 1, 1
    v_lshl_add_u32 {v(vT1)}, {v(vT2)}, 18, {v(vT1)}
    v_add_u32 {v(vPRE)}, {WS_FB}, {v(vT1)}""")
    P.by["BT"].hold = False

    MF16 = "v_mfma_f32_16x16x32_bf16"
    MF16K = "v_mfma_f32_16x16x16_bf16"
    MF32 = "v_mfma_f32_32x32x16_bf16"
    ax = lambda st, t: a(16 * st + 4 * t, 4)

    def trread(dst, addr, off):
        return [f"ds_read_b64_tr_b16 {v(dst, 2)}, {v(addr)} offset:{off}",
                f"ds_read_b64_tr_b16 {v(dst + 2, 2)}, {v(addr)} offset:{off + 512}"]

    V.next = base
    cK = V.get(16, 4)
    fW = V.get(24, 4)
    cB = V.get(56, 4)
    cV, cZ = cB, cB + 16
    fB = V.get(32, 4)

    def kv_reads(st):
        f = fW + 12 * (st & 1)
        o = slot[("KV", st)]
        rd = trread(f, vRKV, o) + [f"ds_read_b128 {ax(st, 0)}, {v(vRX1 if st & 1 else vRX0)} offset:{(st >> 1) * 8192}"]
        rd += trread(f + 4, vRKV, o + 1024)
        rd += [f"ds_read_b128 {ax(st, t)}, {v(vRX1 if st & 1 else vRX0)} offset:{(st >> 1) * 8192 + t * 2048}"
               for t in range(1, 4)]
        rd += [f"ds_read_b128 {v(f + 8, 4)}, {v(vRG)} offset:{st * 64}"]
        P.read(f"KV{st}")
        if st & 1:
            P.read(f"X{st >> 1}")
        return rd

    P.top(["KV0", "G", "X0"])
    stamp("first")
    P.emit(kv_reads(0) + P.take(6))
    for st in range(16):
        P.top([f"KV{st + 1}", f"X{(st + 1) >> 1}"] if st < 15 else [])
        f = fW + 12 * (st & 1)
        cc = lambda r: v(r, 4) if st else "0"
        mf = []
        for t in range(4):
            mf.append(f"{MF16} {v(cK + 4 * t, 4)}, {v(f, 4)}, {ax(st, t)}, {cc(cK + 4 * t)}")
        for t in range(4):
            mf.append(f"{MF16} {v(cV + 4 * t, 4)}, {ax(st, t)}, {v(f + 4, 4)}, {cc(cV + 4 * t)}")
        for t in range(4):
            mf.append(f"{MF16} {v(cZ + 4 * t, 4)}, {v(f + 8, 4)}, {ax(st, t)}, {cc(cZ + 4 * t)}")
        rd = kv_reads(st + 1) if st < 15 else []
        P.emit(weave(mf, rd + P.take(opt.maxu), per_gap=1))
    stamp("kv")
    e(f"s_load_dwordx2 {s(sNON, 2)}, {s(srd['DBG'], 2)}, 0 glc")
    for b in range(2):
        for p in range(2):
            t = 2 * b + p
            e(f"v_cvt_pk_bf16_f32 {v(vKO + 4 * b + 2 * p)}, {v(cK + 4 * t)}, {v(cK + 4 * t + 1)}\n"
              f"v_cvt_pk_bf16_f32 {v(vKO + 4 * b + 2 * p + 1)}, {v(cK + 4 * t + 2)}, {v(cK + 4 * t + 3)}")
    for t in range(4):
        e(f"v_cvt_pk_bf16_f32 {v(vVO + 4 * t)}, {v(cV + 4 * t)}, {v(cV + 4 * t + 1)}\n"
          f"v_cvt_pk_bf16_f32 {v(vVO + 4 * t + 1)}, {v(cV + 4 * t + 2)}, {v(cV + 4 * t + 3)}\n"
          f"v_mov_b32 {v(vVO + 4 * t + 2)}, {ONES}\nv_mov_b32 {v(vVO + 4 * t + 3)}, {ONES}")
    for b in range(2):
        e(f"v_permlane16_swap_b32 {v(vKO + 4 * b)}, {v(vKO + 4 * b + 2)}\n"
          f"v_permlane16_swap_b32 {v(vKO + 4 * b + 1)}, {v(vKO + 4 * b + 3)}")
    for b in range(2):
        e(f"buffer_store_dwordx4 {v(vKO + 4 * b, 4)}, {v(vL16)}, {R('WS')}, {s(sKVO)} offen offset:{b * 2048} sc1")
    for sw in ("16", "32"):
        for t in range(4):
            e(f"v_permlane{sw}_swap_b32 {v(vVO + 4 * t)}, {v(vVO + 4 * t + 2)}\n"
              f"v_permlane{sw}_swap_b32 {v(vVO + 4 * t + 1)}, {v(vVO + 4 * t + 3)}")
    e(f"s_mov_b64 exec, {s(sMV, 2)}")
    for t in range(4):
        tokKV = e(f"buffer_store_dwordx4 {v(vVO + 4 * t, 4)}, {v(vVS)}, {R('WS')}, {s(sKVO)} offen "
                  f"offset:{(t >> 1) * 2048 + 1024 + (t & 1) * 512} sc1")
    e("s_mov_b64 exec, -1")
    e(f"s_mov_b32 {s(sT)}, {NLOG2E}")
    for t in range(4):
        e(f"v_mul_f32 {v(cZ + 4 * t)}, {s(sT)}, {v(cZ + 4 * t)}")
    for t in range(4):
        e(f"v_exp_f32 {v(cZ + 4 * t)}, {v(cZ + 4 * t)}")
    for t in range(4):
        e(f"v_add_f32 {v(cZ + 4 * t)}, 1.0, {v(cZ + 4 * t)}")
    for t in range(4):
        e(f"v_rcp_f32 {v(cZ + 4 * t)}, {v(cZ + 4 * t)}")
    e(f"s_not_b64 {s(sMK, 2)}, {s(sMV, 2)}")
    for t in range(4):
        e(f"v_sub_f32 {v(vGB + t)}, 1.0, {v(cZ + 4 * t)}")
    for b in range(2):
        e(f"v_cndmask_b32 {v(vGA + b)}, {v(cZ + 8 * b)}, {v(cZ + 8 * b + 4)}, {s(sMK, 2)}")

    cQ = cK

    def b_reads(st):
        f = fB + 16 * (st & 1)
        o = slot[("B", st)]
        rd = trread(f + 4, vRB, o + 1024) + \
            [f"ds_read_b128 {v(f + 12, 4)}, {v(vRH1 if st & 1 else vRH0)} offset:{(st >> 1) * 2048}"] + \
            trread(f + 8, vRB, o + 2048) + trread(f, vRB, o)
        P.read(f"B{st}")
        return rd

    P.top(["Q0", "Q1"])
    P.emit(trread(fW, vRQ, slot[("Q", 0)]) + trread(fW + 4, vRQ, slot[("Q", 1)]) + P.take(opt.maxu))
    P.read("Q0", "Q1")
    for ss in range(8):
        P.top([f"Q{2 * ss + 2}", f"Q{2 * ss + 3}"] if ss < 7 else ["XH", "B0"])
        f = fW + 12 * (ss & 1)
        mf = []
        for d in range(2):
            st = 2 * ss + d
            for t in range(4):
                mf.append(f"{MF16} {v(cQ + 4 * t, 4)}, {v(f + 4 * d, 4)}, {ax(st, t)}, "
                          f"{v(cQ + 4 * t, 4) if st else '0'}")
        if ss < 7:
            fn = fW + 12 * ((ss + 1) & 1)
            rd = trread(fn, vRQ, slot[("Q", 2 * ss + 2)]) + trread(fn + 4, vRQ, slot[("Q", 2 * ss + 3)])
            P.read(f"Q{2 * ss + 2}", f"Q{2 * ss + 3}")
        else:
            rd = b_reads(0)
        P.emit(weave(mf, rd + P.take(opt.maxu), per_gap=1))
        if ss == 0:
            e(f"""s_mov_b32 {s(sCNT)}, 0
            L_non:
            s_or_b32 {s(sT)}, {s(sNON)}, {s(sNON + 1)}
            s_cbranch_scc1 L_nonok
            s_load_dwordx2 {s(sNON, 2)}, {s(srd['DBG'], 2)}, 0 glc
            s_add_u32 {s(sCNT)}, {s(sCNT)}, 1
            s_cmp_lt_u32 {s(sCNT)}, {SPIN_MAX}
            s_waitcnt lgkmcnt(0)
            s_cbranch_scc1 L_non
            L_nonok:
            v_mov_b32 {v(vNON)}, {s(sNON)}
            v_mov_b32 {v(vNON + 1)}, {s(sNON + 1)}
            v_mov_b32 {v(vT1)}, 0""")
            A.smem_open = False
        if ss == opt.flagss:
            A.wait(vm=tokKV)
            e(f"""s_mov_b64 exec, 1
            buffer_store_dwordx2 {v(vNON, 2)}, {v(vT1)}, {R('WS')}, {s(sF1)} offen sc1
            s_mov_b64 exec, -1""")
        if ss == 1:
            e(f"""s_getreg_b32 {s(sT)}, hwreg(HW_REG_XCC_ID, 0, 4)
            s_add_u32 {s(sT)}, {s(sT)}, {s(sNON)}
            v_mov_b32 {v(vAN)}, {s(sT)}
            v_mov_b32 {v(vAN + 1)}, {s(sNON + 1)}
            v_lshlrev_b32 {v(vGS)}, 3, {v(vL)}
            s_lshl_b32 {s(sT)}, {s(sRB)}, 4
            s_add_u32 {s(sT)}, {s(sT)}, {s(sHG)}
            s_lshl_b32 {s(sT)}, {s(sT)}, 3
            s_add_u32 {s(sT)}, {s(sT)}, {WS_AN}
            s_cmp_eq_u32 {s(sW)}, 0
            s_cselect_b64 exec, 1, 0
            buffer_store_dwordx2 {v(vAN, 2)}, {v(vT1)}, {R('WS')}, {s(sT)} offen sc1
            s_mov_b64 exec, -1""")
    stamp("q")
    e(f"s_mov_b32 {s(sT)}, {C_SCALE}")
    qpost = []
    for i in range(16):
        qpost.append(f"v_mul_f32 {v(cQ + i)}, {s(sT)}, {v(cQ + i)}")
    for b in range(2):
        for p in range(2):
            t = 2 * b + p
            qpost.append(f"v_cvt_pk_bf16_f32 {v(vQA + 4 * b + 2 * p)}, {v(cQ + 4 * t)}, {v(cQ + 4 * t + 1)}")
            qpost.append(f"v_cvt_pk_bf16_f32 {v(vQA + 4 * b + 2 * p + 1)}, {v(cQ + 4 * t + 2)}, {v(cQ + 4 * t + 3)}")
    for b in range(2):
        qpost.append(f"v_permlane16_swap_b32 {v(vQA + 4 * b)}, {v(vQA + 4 * b + 2)}")
        qpost.append(f"v_permlane16_swap_b32 {v(vQA + 4 * b + 1)}, {v(vQA + 4 * b + 3)}")
    P.emit(qpost)

    bq, bk, bv = cB, cB + 16, cB + 36
    h1 = lambda: "\n".join(f"s_buffer_load_dwordx2 {s(sP + 2 * q, 2)}, {R('WS')}, {s(sTI + q)} glc" for q in range(4))
    for st in range(16):
        P.top([f"B{st + 1}"] if st < 15 else [])
        if st == opt.pollst + 1:
            e(f"s_mov_b32 {s(sCNT)}, 0\nL_h1:")
            for q in range(4):
                e(f"s_xor_b64 {s(sP + 2 * q, 2)}, {s(sP + 2 * q, 2)}, {s(sNON, 2)}")
            e(f"""s_or_b64 {s(sP, 2)}, {s(sP, 2)}, {s(sP + 2, 2)}
            s_or_b64 {s(sP + 4, 2)}, {s(sP + 4, 2)}, {s(sP + 6, 2)}
            s_or_b64 {s(sP, 2)}, {s(sP, 2)}, {s(sP + 4, 2)}
            s_cbranch_scc0 L_h1ok
            {h1()}
            s_add_u32 {s(sCNT)}, {s(sCNT)}, 1
            s_cmp_lt_u32 {s(sCNT)}, {SPIN_MAX}
            s_waitcnt lgkmcnt(0)
            s_cbranch_scc1 L_h1
            L_h1ok:""")
            A.smem_open = False
            P.by["AN"].hold = False
            for ht in range(8):
                P.by[f"H{ht}"].hold = False
            stamp("h1flag")
        f = fB + 16 * (st & 1)
        cc = lambda r: v(r, 4) if st else "0"
        mf = [f"{MF16} {v(bk + 16, 4)}, {v(f + 4, 4)}, {v(f + 12, 4)}, {cc(bk + 16)}",
              f"{MF16} {v(bv + 16, 4)}, {v(f + 12, 4)}, {v(f + 8, 4)}, {cc(bv + 16)}"]
        for t in range(4):
            mf.append(f"{MF16} {v(bk + 4 * t, 4)}, {v(f + 4, 4)}, {ax(st, t)}, {cc(bk + 4 * t)}")
        for t in range(4):
            mf.append(f"{MF16} {v(bv + 4 * t, 4)}, {ax(st, t)}, {v(f + 8, 4)}, {cc(bv + 4 * t)}")
        for t in range(4):
            mf.append(f"{MF16} {v(bq + 4 * t, 4)}, {v(f, 4)}, {ax(st, t)}, {cc(bq + 4 * t)}")
        fill = b_reads(st + 1) if st < 15 else []
        if st == 0:
            for q in range(4):
                fill += [f"s_sub_u32 {s(sP + q)}, {s(sF1)}, {(4 - q) * 4096}", f"s_cmp_ge_u32 {s(sRB)}, {4 - q}",
                         f"s_cselect_b32 {s(sP + q)}, {s(sP + q)}, {s(sF1)}"]
            for q in range(4):
                fill += [f"s_lshl_b32 {s(sP + 4 + q)}, {s(sTI + q)}, 12", f"s_mov_b32 {s(sTI + q)}, {s(sP + q)}"]
            fill += [f"s_mov_b32 {s(sM1)}, {s(sP + 4)}", f"s_mov_b32 {s(sM2)}, {s(sP + 5)}",
                     f"s_mov_b32 {s(sHG)}, {s(sP + 6)}", f"s_mov_b32 {s(sJ)}, {s(sP + 7)}"]
        if 6 <= st <= opt.pollst:
            per = -(-64 // (opt.pollst - 5))
            allw = [(ht, p, i) for ht in range(7, -1, -1) for p in range(2) for i in range(4)]
            for ht, p, i in allw[(st - 6) * per:(st - 5) * per]:
                fill.append(f"v_accvgpr_write_b32 {a(aV(ht, p) + i)}, {s(sTC + (ht >> 1))}")
        if st == opt.pollst:
            fill.append(h1())
        P.emit(weave(mf, fill + P.take(opt.maxu), per_gap=1))
    P.emit(P.force("H0"))
    stamp("bgemm")
    idx4k = (sM1, sM2, sHG, sJ)
    for u in range(4):
        e(f"s_lshl_b32 {s(sTA + u)}, {s(idx4k[u])}, 5")
    e(f"s_lshl_b32 {s(sT)}, {s(sRB)}, 16\ns_lshl_b32 {s(sT2)}, {s(sW)}, 14\ns_add_u32 {s(sT)}, {s(sT)}, {s(sT2)}")
    for u in range(4):
        e(f"s_add_u32 {s(sTB + u)}, {s(sT)}, {s(idx4k[u])}\ns_add_u32 {s(sTC + u)}, {s(sTB + u)}, {WS_OB}\n"
          f"s_add_u32 {s(sTB + u)}, {s(sTB + u)}, {WS_OA}")

    V.next = base
    uQ, uK, uV = V.get(8, 4), V.get(10, 2), V.get(12, 2)
    uP = cB + 36
    uM = V.get(8, 2)
    assert V.next <= cB
    uS = fB
    e(f"s_mov_b32 {s(sT)}, {C_SCALE}")
    for t in range(5):
        e(f"v_cvt_pk_bf16_f32 {v(uK + 2 * t)}, {v(bk + 4 * t)}, {v(bk + 4 * t + 1)}\n"
          f"v_cvt_pk_bf16_f32 {v(uK + 2 * t + 1)}, {v(bk + 4 * t + 2)}, {v(bk + 4 * t + 3)}")
    for p in range(2):
        for i, t in enumerate((4, p, 2 + p)):
            e(f"v_cvt_pk_bf16_f32 {v(uV + 6 * p + 2 * i)}, {v(bv + 4 * t)}, {v(bv + 4 * t + 1)}\n"
              f"v_cvt_pk_bf16_f32 {v(uV + 6 * p + 2 * i + 1)}, {v(bv + 4 * t + 2)}, {v(bv + 4 * t + 3)}")
    for t in range(4):
        for i in range(4):
            e(f"v_mul_f32 {v(bq + 4 * t + i)}, {s(sT)}, {v(bq + 4 * t + i)}")
        e(f"v_cvt_pk_bf16_f32 {v(uQ + 2 * t)}, {v(bq + 4 * t)}, {v(bq + 4 * t + 1)}\n"
          f"v_cvt_pk_bf16_f32 {v(uQ + 2 * t + 1)}, {v(bq + 4 * t + 2)}, {v(bq + 4 * t + 3)}")
    for t in range(4):
        b, p = t >> 1, t & 1
        kp, mp = (4, vMB + 8 + 4 * p) if b == 0 else (p, vMB + 4)
        e(f"{MF16K} {v(uS + 8 * t, 4)}, {v(uK + 2 * kp, 2)}, {v(uQ + 2 * t, 2)}, {v(mp, 4)}\n"
          f"{MF16K} {v(uS + 8 * t + 4, 4)}, {v(uK + 2 * t, 2)}, {v(uQ + 2 * t, 2)}, {v(vMB, 4)}")
    for t in range(4):
        z = uS + 8 * t
        e(f"v_max3_f32 {v(uM + t)}, {v(z)}, {v(z + 1)}, {v(z + 2)}\n"
          f"v_max3_f32 {v(uM + 4 + t)}, {v(z + 3)}, {v(z + 4)}, {v(z + 5)}\n"
          f"v_max3_f32 {v(uM + t)}, {v(uM + t)}, {v(z + 6)}, {v(z + 7)}\n"
          f"v_max_f32 {v(uM + t)}, {v(uM + t)}, {v(uM + 4 + t)}")
    for sw in ("16", "32"):
        for t in range(4):
            e(f"v_mov_b32 {v(uM + 4 + t)}, {v(uM + t)}")
        for t in range(4):
            e(f"v_permlane{sw}_swap_b32 {v(uM + t)}, {v(uM + 4 + t)}")
        for t in range(4):
            e(f"v_max_f32 {v(uM + t)}, {v(uM + t)}, {v(uM + 4 + t)}")
    uO, uL, vONE = cB, cB + 16, cB + 32
    for q in range(4):
        e(f"v_mov_b32 {v(vONE + q)}, {ONES}")
    for t in range(4):
        z = uS + 8 * t
        for i in range(8):
            e(f"v_sub_f32 {v(z + i)}, {v(z + i)}, {v(uM + t)}")
        for i in range(8):
            e(f"v_exp_f32 {v(z + i)}, {v(z + i)}")
        for i in range(4):
            e(f"v_cvt_pk_bf16_f32 {v(uP + 4 * t + i)}, {v(z + 2 * i)}, {v(z + 2 * i + 1)}")
        if t:
            b, p = (t - 1) >> 1, (t - 1) & 1
            e(f"{MF16} {v(uL + 4 * (t - 1), 4)}, {v(vONE, 4)}, {v(uP + 4 * (t - 1), 4)}, 0\n"
              f"{MF16} {v(uO + 4 * (t - 1), 4)}, {v(uV + 6 * p + 2 * b, 4)}, {v(uP + 4 * (t - 1), 4)}, 0")
    e(f"{MF16} {v(uL + 12, 4)}, {v(vONE, 4)}, {v(uP + 12, 4)}, 0\n"
      f"{MF16} {v(uO + 12, 4)}, {v(uV + 8, 4)}, {v(uP + 12, 4)}, 0")
    for t in range(4):
        e(f"v_rcp_f32 {v(uL + 4 * t)}, {v(uL + 4 * t)}")
    for t in range(4):
        e(f"v_mul_f32 {v(uL + 4 * t)}, {v(uL + 4 * t)}, {v(vGB + t)}")
    for t in range(4):
        for i in range(4):
            e(f"v_mul_f32 {v(uO + 4 * t + i)}, {v(uO + 4 * t + i)}, {v(uL + 4 * t)}")
        e(f"v_cvt_pk_bf16_f32 {v(uQ + 2 * t)}, {v(uO + 4 * t)}, {v(uO + 4 * t + 1)}\n"
          f"v_cvt_pk_bf16_f32 {v(uQ + 2 * t + 1)}, {v(uO + 4 * t + 2)}, {v(uO + 4 * t + 3)}")
    for b in range(2):
        e(f"v_permlane32_swap_b32 {v(uQ + 4 * b)}, {v(uQ + 4 * b + 2)}\n"
          f"v_permlane32_swap_b32 {v(uQ + 4 * b + 1)}, {v(uQ + 4 * b + 3)}")
    e(f"s_add_u32 {s(sT)}, {s(sOBW)}, 32768")
    e(f"buffer_store_dwordx4 {v(uQ, 4)}, {v(vOB)}, {R('WS')}, {s(sOBW)} offen sc1")
    tokOB = e(f"buffer_store_dwordx4 {v(uQ + 4, 4)}, {v(vOB)}, {R('WS')}, {s(sT)} offen sc1")
    stamp("battn")

    P.top([], barrier=True)
    aOB, aOA = 96, 160
    e(f"""v_and_b32 {v(vT1)}, 3, {v(vL)}
    v_lshlrev_b32 {v(vT1)}, 7, {v(vT1)}
    v_bfe_u32 {v(vT2)}, {v(vL)}, 2, 2
    v_lshl_add_u32 {v(vT1)}, {v(vT2)}, 14, {v(vT1)}
    v_and_b32 {v(vT2)}, 0x200, {v(vOA)}
    v_add_u32 {v(vPRE)}, {v(vT1)}, {v(vT2)}
    s_lshl_b32 {s(sM3)}, {s(sRB)}, 8
    s_lshl_b32 {s(sT)}, {s(sHB)}, 3
    s_add_u32 {s(sF1)}, {s(sM3)}, {s(sT)}
    s_add_u32 {s(sF1)}, {s(sF1)}, {WS_FB}
    s_lshl_b32 {s(sT)}, {s(sHD)}, 3
    s_add_u32 {s(sKVO)}, {s(sM3)}, {s(sT)}
    s_add_u32 {s(sKVO)}, {s(sKVO)}, {WS_FA}
    s_add_u32 {s(sM3)}, {s(sM3)}, {WS_FB}
    v_mov_b32 {v(vT1)}, 0""")
    P.add(Item("PT", [["s_mov_b64 exec, 0xffff\n"
                       f"buffer_load_dword {v(vDUM)}, {v(vPRE)}, {R('WS')}, {s(sOAW)} offen\ns_mov_b64 exec, -1"],
                      ["s_mov_b64 exec, 1\n"
                       f"buffer_load_dword {v(vDUM)}, {v(vOUT)}, {R('OUT')}, 0 offen\ns_mov_b64 exec, -1"]], 8192))
    for u in range(4):
        P.add(wo_item("WOB", "WOB", L_WOB, u))
    for u in range(4):
        P.add(wo_item("WOA", "WOA", L_WOA, u))
    for u in range(4):
        it = P.add(Item(f"OB{u}", [[f"buffer_load_dwordx4 {a(aOB + 16 * u + 4 * q, 4)}, {v(vL16)}, {R('WS')}, "
                                    f"{s(sTC + u)} offen offset:{q * 1024} sc1"] for q in range(4)], 16384))
        it.hold = True

    V.next = base
    vPL = V.get(2, 2)
    cS = V.get(32, 4)
    cP = V.get(16, 4)
    cO = V.get(32, 4)
    kop = lambda t: v(vKO + 4 * t[1], 4) if t[0] == "o" else a(aK(t[1]), 4)
    vop = lambda t, p: v(vVO + 8 * t[1] + 4 * p, 4) if t[0] == "o" else a(aV(t[1], p), 4)
    steps = [(("o", 0), 0, vMD), (("o", 1), 1, vMD), (("o", 0), 1, None)]
    for ht in range(7, 1, -1):
        steps += [(("h", ht), 0, None), (("h", ht), 1, None)]
    steps += [(("h", 1), 0, None), (("h", 1), 1, vMF), (("h", 0), 0, vMF)]

    def qk(n):
        t, q, m = steps[n]
        return f"{MF32} {v(cS + 16 * (n & 1), 16)}, {kop(t)}, {v(vQA + 4 * q, 4)}, {v(m, 16) if m else '0'}"

    seen = set()

    def pv(n, p):
        t, q, m = steps[n]
        c = v(cO + 16 * q, 16) if q in seen else "0"
        seen.add(q)
        return f"{MF32} {v(cO + 16 * q, 16)}, {vop(t, p)}, {v(cP + 8 * (n & 1) + 4 * p, 4)}, {c}"

    def flag_store(tag, soff):
        e(f"s_cmp_eq_u32 {s(sLOC)}, 8\ns_mov_b64 exec, 1\ns_cbranch_scc1 L_{tag}l")
        e(f"buffer_store_dwordx2 {v(vNON, 2)}, {v(vT1)}, {R('WS')}, {s(soff)} offen sc1\ns_branch L_{tag}j\nL_{tag}l:")
        A.vm -= 1
        e(f"buffer_store_dwordx2 {v(vNON, 2)}, {v(vT1)}, {R('WS')}, {s(soff)} offen\nL_{tag}j:\ns_mov_b64 exec, -1")

    def board_load(off):
        e("s_mov_b64 exec, 0xffffffff")
        t = e(f"buffer_load_dwordx2 {v(vPL, 2)}, {v(vGS)}, {R('WS')}, {s(sM3)} offen offset:0 sc1" if off == 0 else
              f"buffer_load_dwordx2 {v(vPL, 2)}, {v(vGS)}, {R('WS')}, {s(sOFF)} offen sc1")
        e("s_mov_b64 exec, -1")
        return t

    def board_check(tag, off, tok):
        A.wait(vm=tok)
        e(f"""s_mov_b32 {s(sCNT)}, 0
        L_{tag}:
        v_cmp_ne_u64 vcc, {v(vPL, 2)}, {v(vNON, 2)}
        s_nop 1
        s_cmp_eq_u32 vcc_lo, 0
        s_cbranch_scc1 L_{tag}ok""")
        vm0 = A.vm
        board_load(off)
        A.vm = vm0
        e(f"""s_add_u32 {s(sCNT)}, {s(sCNT)}, 1
        s_cmp_lt_u32 {s(sCNT)}, {SPIN_MAX}
        s_waitcnt vmcnt(0)
        s_cbranch_scc1 L_{tag}
        L_{tag}ok:""")

    e(qk(0))
    NS = len(steps)
    tokPB = None
    for n in range(NS):
        z, pp = cS + 16 * (n & 1), cP + 8 * (n & 1)
        if n + 1 < NS:
            t = steps[n + 1][0]
            if t[0] == "h":
                A.wait(vm=P.by[f"H{t[1]}"].tok)
                P.waited = max(P.waited, P.items.index(P.by[f"H{t[1]}"]))
                if t[1] == 7 and steps[n + 1][1] == 0:
                    stamp("halo7")
            e(qk(n + 1))
        if n == opt.obflag:
            A.wait(vm=tokOB)
            e(f"""v_cmp_eq_u64 vcc, {v(vX0, 2)}, {v(vAN, 2)}
            s_nop 1
            s_and_b32 {s(sLOC)}, vcc_lo, 0xff
            s_bcnt1_i32_b32 {s(sLOC)}, {s(sLOC)}""")
            flag_store("fb", sF1)
        if n == opt.obpoll:
            tokPB = board_load(0)
        if n == opt.obpoll + 2:
            board_check("pb", 0, tokPB)
            for u in range(4):
                P.by[f"OB{u}"].hold = False
        mem = P.take(opt.attu, look=1 << 30) if n >= opt.att0 else []
        groups = [[] for _ in range(8)]
        gi = 1
        cur = []
        for x in mem:
            cur.append(x)
            if isinstance(x, tuple):
                groups[gi % 8] += cur
                cur = []
                gi += 2 if opt.attu <= 4 else 1
        for i in range(8):
            e(f"v_exp_f32 {v(z + 2 * i)}, {v(z + 2 * i)}\nv_exp_f32 {v(z + 2 * i + 1)}, {v(z + 2 * i + 1)}")
            if i:
                e(f"v_cvt_pk_bf16_f32 {v(pp + i - 1)}, {v(z + 2 * i - 2)}, {v(z + 2 * i - 1)}")
            if n and i == 1:
                e(pv(n - 1, 1))
            if i == 6:
                e(pv(n, 0))
            P.emit(groups[i])
        e(f"v_cvt_pk_bf16_f32 {v(pp + 7)}, {v(z + 14)}, {v(z + 15)}")
    e(pv(NS - 1, 1))
    stamp("aattn")

    e(f"s_mov_b32 {s(sT)}, {L_LO}\ns_mov_b32 {s(sT2)}, {L_HI}")
    oP = cP

    def finish_q(q):
        o = cO + 16 * q
        return [f"v_rcp_f32 {v(o + 9)}, {v(o + 8)}", f"s_nop 0", f"v_mul_f32 {v(o + 9)}, {v(o + 9)}, {v(vGA + q)}"] + \
            [f"v_mul_f32 {v(o + i)}, {v(o + i)}, {v(o + 9)}" for i in range(8)] + \
            [f"v_cvt_pk_bf16_f32 {v(oP + 4 * q + i)}, {v(o + 2 * i)}, {v(o + 2 * i + 1)}" for i in range(4)]

    for q in (1, 0):
        o = cO + 16 * q
        e(f"""v_cmp_lt_f32 {s(sP, 2)}, {s(sT)}, {v(o + 8)}
        v_cmp_gt_f32 {s(sP + 2, 2)}, {s(sT2)}, {v(o + 8)}
        s_and_b64 {s(sP, 2)}, {s(sP, 2)}, {s(sP + 2, 2)}
        s_not_b64 {s(sP, 2)}, {s(sP, 2)}
        s_cbranch_scc1 L_slow{q}
        L_back{q}:""")
        P.emit(finish_q(q))
    e(f"s_add_u32 {s(sT)}, {s(sOAW)}, 32768\ns_cmp_eq_u32 {s(sLOC)}, 8\ns_cbranch_scc1 L_oal")
    e(f"buffer_store_dwordx4 {v(oP + 4, 4)}, {v(vOA)}, {R('WS')}, {s(sT)} offen sc1\n"
      f"buffer_store_dwordx4 {v(oP, 4)}, {v(vOA)}, {R('WS')}, {s(sOAW)} offen sc1\ns_branch L_oaj\nL_oal:")
    A.vm -= 2
    e(f"buffer_store_dwordx4 {v(oP + 4, 4)}, {v(vOA)}, {R('WS')}, {s(sT)} offen {opt.oast}")
    tokOA = e(f"buffer_store_dwordx4 {v(oP, 4)}, {v(vOA)}, {R('WS')}, {s(sOAW)} offen {opt.oast}")
    e("L_oaj:")
    P.emit(P.force("OB3"))

    V.next = cP + 16
    cD = V.get(16, 4)
    fO = V.get(48, 4)

    def wo_reads(st):
        f = fO + 16 * (st % 3)
        o = (st & 15) * 4096
        out = []
        for ct in range(4):
            out += [f"ds_read_b64_tr_b16 {v(f + 4 * ct, 2)}, {v(vRO + ct)} offset:{o}",
                    f"ds_read_b64_tr_b16 {v(f + 4 * ct + 2, 2)}, {v(vRO + ct)} offset:{o + 256}"]
        return out

    A.wait(vm=tokOA)
    flag_store("fa", sKVO)
    stamp("oapub")
    P.top(["WOA3"])
    e(f"s_add_u32 {s(sOFF)}, {s(sM3)}, {WS_FA - WS_FB}")
    ltok = {}

    def emit_reads(st):
        for x in wo_reads(st):
            ltok[st] = e(x)

    emit_reads(0)
    emit_reads(1)
    tokPA = None
    oatok = {}
    for st in range(32):
        if st == 14:
            for ct in range(4):
                e(f"v_add_u32 {v(vRO + ct)}, {L_WOA - L_WOB}, {v(vRO + ct)}")
        if st == opt.oapoll:
            tokPA = board_load(1)
        if st == min(opt.oapoll + opt.oagap, 16):
            board_check("pa", 1, tokPA)
            stamp("oaflag")
            for u in range(4):
                for q in range(4):
                    oatok[4 * u + q] = e(f"buffer_load_dwordx4 {a(aOA + 16 * u + 4 * q, 4)}, {v(vL16)}, {R('WS')}, "
                                         f"{s(sTB + u)} offen offset:{q * 1024} sc1")
        if st < 16:
            A.wait(vm=P.by[f"OB{st // 4}"].tok, lg=ltok[st])
            ob = a(aOB + 4 * st, 4)
        else:
            A.wait(vm=oatok[st - 16], lg=ltok[st])
            ob = a(aOA + 4 * (st - 16), 4)
        f = fO + 16 * (st % 3)
        rd = wo_reads(st + 2) if st + 2 < 32 else []
        for ct in range(4):
            e(f"{MF16} {v(cD + 4 * ct, 4)}, {v(f + 4 * ct, 4)}, {ob}, {v(cD + 4 * ct, 4) if st else '0'}")
            for x in rd[2 * ct:2 * ct + 2]:
                ltok[st + 2] = e(x)
    stamp("proj")
    for ct in range(4):
        e(f"v_cvt_pk_bf16_f32 {v(fO + 2 * ct)}, {v(cD + 4 * ct)}, {v(cD + 4 * ct + 1)}\n"
          f"v_cvt_pk_bf16_f32 {v(fO + 2 * ct + 1)}, {v(cD + 4 * ct + 2)}, {v(cD + 4 * ct + 3)}")
    for u in range(2):
        e(f"v_permlane16_swap_b32 {v(fO + 4 * u)}, {v(fO + 4 * u + 2)}\n"
          f"v_permlane16_swap_b32 {v(fO + 4 * u + 1)}, {v(fO + 4 * u + 3)}")
    for u in range(2):
        e(f"buffer_store_dwordx4 {v(fO + 4 * u, 4)}, {v(vOUT)}, {R('OUT')}, 0 offen offset:{64 * u} {opt.outst}")
    if opt.stamp:
        A.wait(vm="all")
        stamp("end")
        e(f"""s_lshl_b32 {s(sT)}, s2, 2
        s_add_u32 {s(sT)}, {s(sT)}, {s(sW)}
        s_lshl_b32 {s(sT)}, {s(sT)}, 8
        s_add_u32 {s(sT)}, {s(sT)}, {WS_STAMP}
        v_writelane_b32 {v(vSTAMP)}, {s(sLOC)}, 31
        v_lshlrev_b32 {v(vT1)}, 2, {v(vL)}
        buffer_store_dword {v(vSTAMP)}, {v(vT1)}, {R('WS')}, {s(sT)} offen""")
    e("L_end:\ns_endpgm")

    for q in (1, 0):
        mine = [(t, m) for (t, qq, m) in steps if qq == q]
        z, mx, o = cS, cS + 16, cO + 16 * q
        e(f"L_slow{q}:\ns_nop 15\nv_mov_b32 {v(mx)}, {v(vNINF)}")
        for ps in range(2):
            first = True
            for i, (t, m) in enumerate(mine):
                lab = f"L_sk{q}_{ps}_{i}"
                if t[0] == "h":
                    e(f"s_cmp_lt_u32 {s(sRB)}, {4 - (t[1] >> 1)}\ns_cbranch_scc1 {lab}")
                e(f"{MF32} {v(z, 16)}, {kop(t)}, {v(vQA + 4 * q, 4)}, {v(m, 16) if m else '0'}")
                if ps == 0:
                    for k in range(8):
                        e(f"v_max3_f32 {v(mx)}, {v(mx)}, {v(z + 2 * k)}, {v(z + 2 * k + 1)}")
                else:
                    for k in range(16):
                        e(f"v_sub_f32 {v(z + k)}, {v(z + k)}, {v(mx)}")
                    for k in range(16):
                        e(f"v_exp_f32 {v(z + k)}, {v(z + k)}")
                    for k in range(8):
                        e(f"v_cvt_pk_bf16_f32 {v(mx + 4 + k)}, {v(z + 2 * k)}, {v(z + 2 * k + 1)}")
                    for p in range(2):
                        e(f"{MF32} {v(o, 16)}, {vop(t, p)}, {v(mx + 4 + 4 * p, 4)}, "
                          f"{'0' if first and p == 0 else v(o, 16)}")
                first = False
                e(f"s_nop 15\n{lab}:")
            if ps == 0:
                e(f"v_mov_b32 {v(mx + 1)}, {v(mx)}\nv_permlane32_swap_b32 {v(mx)}, {v(mx + 1)}\n"
                  f"v_max_f32 {v(mx)}, {v(mx)}, {v(mx + 1)}")
        e(f"s_nop 15\ns_branch L_back{q}")
    e("L_codeend:")

    body, nops = A.finish()
    head = f"""; Fused gated mix of sliding-window attention (A) and dilated local attention (B).
; One workgroup per CU: 64 rows x 4 heads of each branch; K/V and attention outputs are handed
; @launch grid=(256,1,1) block=(256,1,1) lds={LDS_BYTES}
.amdgcn_target "amdgcn-amd-amdhsa--gfx950"
.text
.globl {NAME}_kernel
.p2align 8
.type {NAME}_kernel,@function
{NAME}_kernel:
"""
    tail = f""".section .rodata,"a"
.p2align 6
.amdhsa_kernel {NAME}_kernel
  .amdhsa_next_free_vgpr 512
  .amdhsa_next_free_sgpr 102
  .amdhsa_accum_offset 256
  .amdhsa_group_segment_fixed_size 0
  .amdhsa_kernarg_size 80
  .amdhsa_user_sgpr_count 2
  .amdhsa_user_sgpr_kernarg_segment_ptr 1
  .amdhsa_system_sgpr_workgroup_id_x 1
.end_amdhsa_kernel
"""
    info = dict(nops=nops, sgpr=S.high, vgpr=V.high, lines=body.count("\n"), stamps=stamps)
    return head + body + tail, info


def parser():
    ap = argparse.ArgumentParser()
    ap.add_argument("-o", default="cdna_kernels/" + NAME + ".s")
    ap.add_argument("--map", default="row")
    ap.add_argument("--xb", type=int, default=4)
    ap.add_argument("--xo", type=int, default=2)
    ap.add_argument("--look", type=int, default=36 * 1024)
    ap.add_argument("--maxu", type=int, default=6)
    ap.add_argument("--flagss", type=int, default=6)
    ap.add_argument("--pollst", type=int, default=10)
    ap.add_argument("--obflag", type=int, default=4)
    ap.add_argument("--obpoll", type=int, default=10)
    ap.add_argument("--att0", type=int, default=0)
    ap.add_argument("--attu", type=int, default=3)
    ap.add_argument("--oapoll", type=int, default=4)
    ap.add_argument("--oagap", type=int, default=6)
    ap.add_argument("--oast", default="")
    ap.add_argument("--outst", default="")
    ap.add_argument("--codelines", type=int, default=3)
    ap.add_argument("--stamp", type=int, default=0)
    return ap


if __name__ == "__main__":
    opt = parser().parse_args()
    txt, info = generate(opt)
    open(opt.o, "w").write(txt)
    print(info)
```

```python
import sys, argparse
from asmlib import Asm, weave

NAME = "gated_mix__sliding_block__sliding_local_dilated__prompt"
C_SCALE = 0x3EB8AA3B
NLOG2E = 0xBFB8AA3B
NINF = 0xFF800000
ONES = 0x3F803F80
L_LO, L_HI = 0x17800000, 0x67800000
SPIN_MAX = 200000

WS_KV, WS_OA, WS_OB = 0, 4 << 20, 6 << 20
WS_F1, WS_FB, WS_FA = 8 << 20, (8 << 20) + (256 << 10), (8 << 20) + (512 << 10)
WS_AN = (8 << 20) + (768 << 10)
WS_STAMP = 16 << 20
WS_SIZE = 32 << 20
OOB = 0x7FFF0000

L_X, L_RING, RING_SZ, L_XH, L_G = 0, 65536, 65536, 131072, 147456
L_WOB, L_WOA = 0, 65536
LDS_BYTES = 151552


class Regs:
    def __init__(self, kind, start, limit):
        self.kind, self.next, self.limit = kind, start, limit
        self.high = start

    def get(self, n=1, align=1):
        self.next = -(-self.next // align) * align
        r = self.next
        self.next += n
        self.high = max(self.high, self.next)
        assert self.next <= self.limit, f"out of {self.kind} registers"
        return r


def v(r, n=1):
    return f"v{r}" if n == 1 else f"v[{r}:{r + n - 1}]"


def a(r, n=1):
    return f"a{r}" if n == 1 else f"a[{r}:{r + n - 1}]"


def s(r, n=1):
    return f"s{r}" if n == 1 else f"s[{r}:{r + n - 1}]"


class Item:
    def __init__(self, name, units, nbytes, lds=None):
        self.name, self.units, self.nbytes, self.lds = name, units, nbytes, lds
        self.issued = 0
        self.tok = None
        self.freed = lds is None
        self.prev = []
        self.hold = False


class Pipe:
    def __init__(self, A, look):
        self.A, self.items, self.pos, self.look = A, [], 0, look
        self.by = {}
        self.waited = -1
        self.pending_free = []

    def add(self, it):
        if it.lds:
            lo, hi = it.lds
            it.prev = [o for o in self.items if o.lds and o.lds[0] < hi and lo < o.lds[1]]
        self.items.append(it)
        self.by[it.name] = it
        return it

    def can(self, it):
        return not it.hold and all(o.freed for o in it.prev)

    def take(self, maxunits, look=None):
        look = self.look if look is None else look
        out = []
        while maxunits > 0 and self.pos < len(self.items):
            it = self.items[self.pos]
            ahead = sum(o.nbytes for o in self.items[self.waited + 1:self.pos + 1])
            if not self.can(it) or ahead > look:
                break
            u = it.units[it.issued]
            it.issued += 1
            last = it.issued == len(it.units)
            for t in u[:-1]:
                out.append(t)
            out.append((u[-1], it if last else None))
            if last:
                self.pos += 1
            maxunits -= 1
        return out

    def force(self, name):
        idx = self.items.index(self.by[name])
        out = []
        while self.pos <= idx:
            assert self.can(self.items[self.pos]), f"cannot issue {self.items[self.pos].name} (needed for {name})"
            out += self.take(1, look=1 << 30)
        return out

    def emit(self, lst):
        for x in lst:
            if isinstance(x, tuple):
                tok = self.A.e(x[0])
                if x[1] is not None:
                    x[1].tok = tok
            else:
                self.A.e(x)

    def top(self, names, barrier=True):
        tok = None
        for n in names:
            self.emit(self.force(n))
            t = self.by[n].tok
            tok = t if tok is None or t[1] > tok[1] else tok
            self.waited = max(self.waited, self.items.index(self.by[n]))
        self.A.wait(vm=tok, lg="all")
        if barrier:
            self.A.e("s_barrier")
            for it in self.pending_free:
                it.freed = True
            self.pending_free = []

    def read(self, *names):
        self.pending_free += [self.by[n] for n in names]


def generate(opt):
    A = Asm()
    e = A.e
    S = Regs("s", 4, 102)
    V = Regs("v", 1, 256)
    srd = {n: S.get(4, 4) for n in ("X", "XH", "KV", "Q", "B", "WOA", "WOB", "WS", "OUT", "G", "DBG")}
    R = lambda n: s(srd[n], 4)
    sNON = S.get(2, 2)
    sP = S.get(8, 4)
    sMK = S.get(2, 2)
    sMV = S.get(2, 2)
    sHG, sJ, sRB, sW, sHD, sHB, sCG, sT, sT2, sOFF, sLOC, sCNT = (S.get() for _ in range(12))
    sTI = S.get(4)
    sTA = S.get(4)
    sTB = S.get(4)
    sTC = S.get(4)
    sM1, sM2, sM3, sM4 = (S.get() for _ in range(4))
    sKVO, sF1, sOAW, sOBW = (S.get() for _ in range(4))
    stamps = []

    def stamp(tag):
        if opt.stamp:
            e(f"s_memrealtime {s(sP + 6, 2)}")
            A.wait(lg="all")
            e(f"v_writelane_b32 {v(vSTAMP)}, {s(sP + 6)}, {len(stamps)}")
            stamps.append(tag)

    vL, vT0, vT1, vT2, vT3 = (V.get() for _ in range(5))
    vX0, vX1, vWS, vH0, vH1, vGS = (V.get() for _ in range(6))
    assert vX0 % 2 == 0
    vRKV, vRQ, vRB, vRX0, vRX1, vRH0, vRH1, vRG = (V.get() for _ in range(8))
    vL16, vVS, vOA, vOB, vOUT, vNINF, vPRE = (V.get() for _ in range(7))
    vOS = V.get(4)
    vRO = V.get(4)
    vNON = V.get(2, 2)
    vAN = V.get(2, 2)
    vGB = V.get(4)
    vGA = V.get(2)
    vDUM, vSTAMP = V.get(), V.get()
    vMD, vMF, vMB = V.get(16, 4), V.get(16, 4), V.get(16, 4)
    vKO = V.get(8, 4)
    vVO = V.get(16, 4)
    vQA = V.get(8, 4)
    base = V.get(0, 4)

    e(f"s_cmp_ge_u32 s2, 256\ns_cbranch_scc1 L_end")
    if opt.stamp:
        e(f"s_memrealtime {s(sNON, 2)}")
    for off, n in ((0, "X"), (8, "KV"), (48, "G"), (0, "XH"), (8, "Q"), (32, "B"), (16, "WOA"), (40, "WOB"),
                   (56, "OUT"), (64, "DBG"), (72, "WS")):
        e(f"s_load_dwordx2 {s(srd[n], 2)}, s[0:1], {off}")
    e(f"v_lshrrev_b32 {v(vT0)}, 6, v0\nv_and_b32 {v(vL)}, 63, v0")
    if opt.map == "row":
        e(f"""s_lshr_b32 {s(sT)}, s2, 3
        s_and_b32 {s(sHG)}, {s(sT)}, 7
        s_lshr_b32 {s(sJ)}, {s(sT)}, 3
        s_and_b32 {s(sT2)}, s2, 7
        s_lshl_b32 {s(sT2)}, {s(sT2)}, 2
        s_add_u32 {s(sRB)}, {s(sT2)}, {s(sJ)}""")
    else:
        e(f"""s_lshr_b32 {s(sT)}, s2, 3
        s_and_b32 {s(sHG)}, {s(sT)}, 3
        s_and_b32 {s(sT2)}, s2, 1
        s_lshl_b32 {s(sT2)}, {s(sT2)}, 2
        s_add_u32 {s(sHG)}, {s(sHG)}, {s(sT2)}
        s_lshr_b32 {s(sRB)}, {s(sT)}, 2
        s_lshr_b32 {s(sJ)}, {s(sRB)}, 1
        s_bfe_u32 {s(sT2)}, s2, 0x20001
        s_lshl_b32 {s(sT2)}, {s(sT2)}, 3
        s_add_u32 {s(sRB)}, {s(sRB)}, {s(sT2)}""")
    e(f"v_readfirstlane_b32 {s(sW)}, {v(vT0)}")
    e(f"""v_lshrrev_b32 {v(vT1)}, 3, {v(vL)}
    v_and_b32 {v(vT2)}, 7, {v(vL)}
    v_bfe_u32 {v(vT3)}, {v(vL)}, 4, 1
    v_and_b32 {v(vWS)}, 1, {v(vT0)}
    v_lshl_or_b32 {v(vT3)}, {v(vWS)}, 1, {v(vT3)}
    v_lshlrev_b32 {v(vT3)}, 1, {v(vT3)}
    v_xor_b32 {v(vT3)}, {v(vT3)}, {v(vT2)}
    v_lshl_add_u32 {v(vWS)}, {v(vT0)}, 3, {v(vT1)}
    v_mul_u32_u24 {v(vWS)}, 3072, {v(vWS)}
    v_lshl_add_u32 {v(vWS)}, {v(vT3)}, 4, {v(vWS)}""")
    for u in range(4):
        e(f"s_add_u32 {s(sTI + u)}, {s(sJ)}, {u}\ns_and_b32 {s(sTI + u)}, {s(sTI + u)}, 3\n"
          f"s_mul_i32 {s(sTA + u)}, {s(sTI + u)}, {4 * 32 * 3072}")
    e(f"""s_lshl_b32 {s(sM1)}, {s(sW)}, 10
    s_lshl_b32 {s(sM2)}, {s(sW)}, 11
    s_mul_i32 {s(sM3)}, {s(sW)}, 3072
    s_lshl_b32 {s(sM4)}, {s(sW)}, 12
    s_xor_b32 {s(sHB)}, {s(sHG)}, {opt.xb}
    s_xor_b32 {s(sCG)}, {s(sHG)}, {opt.xo}""")
    e(f"""v_lshrrev_b32 {v(vX1)}, 1, {v(vT0)}
    v_lshlrev_b32 {v(vX1)}, 5, {v(vX1)}
    v_and_or_b32 {v(vX1)}, {v(vT0)}, 1, {v(vX1)}
    v_lshl_add_u32 {v(vX1)}, {v(vT1)}, 1, {v(vX1)}
    v_lshrrev_b32 {v(vT3)}, 4, {v(vL)}
    v_xor_b32 {v(vT3)}, {v(vT3)}, {v(vT2)}
    v_lshlrev_b32 {v(vT3)}, 4, {v(vT3)}
    v_lshl_add_u32 {v(vX0)}, {v(vX1)}, 10, {v(vT3)}
    v_lshl_add_u32 {v(vH0)}, {v(vT1)}, 10, {v(vT3)}
    v_xor_b32 {v(vX1)}, 64, {v(vX0)}
    v_add_u32 {v(vX1)}, {16384 - 1024}, {v(vX1)}
    v_xor_b32 {v(vH1)}, 64, {v(vH0)}
    v_add_u32 {v(vH1)}, {8192 - 1024}, {v(vH1)}
    v_lshl_add_u32 {v(vPRE)}, {v(vT0)}, 4, {v(vL)}
    v_lshlrev_b32 {v(vPRE)}, 10, {v(vPRE)}
    v_lshlrev_b32 {v(vL16)}, 4, {v(vL)}""")
    e(f"""s_lshl_b32 {s(sT)}, {s(sJ)}, 8
    v_add_u32 {v(vGS)}, {s(sT)}, {v(vL16)}
    v_and_b32 {v(vGS)}, 1023, {v(vGS)}""")
    if opt.stamp:
        e(f"v_mov_b32 {v(vSTAMP)}, 0")
    A.wait(lg="all")
    if opt.stamp:
        e(f"v_writelane_b32 {v(vSTAMP)}, {s(sNON)}, 0")
        stamps.append("start")

    def mksrd(n, off_reg, size, const=0):
        b = srd[n]
        if off_reg is not None:
            if const:
                e(f"s_add_u32 {s(sT2)}, {off_reg}, {const}")
                off_reg = s(sT2)
            e(f"s_add_u32 {s(b)}, {s(b)}, {off_reg}\ns_addc_u32 {s(b + 1)}, {s(b + 1)}, 0\n"
              f"s_sub_u32 {s(b + 2)}, {size}, {off_reg}")
        else:
            e(f"s_mov_b32 {s(b + 2)}, {size}")
        e(f"s_mov_b32 {s(b + 3)}, 0x20000")

    e(f"s_lshl_b32 {s(sOFF)}, {s(sRB)}, 16")
    mksrd("X", s(sOFF), 2 << 20)
    e(f"s_lshl_b32 {s(sT)}, {s(sHG)}, 7")
    mksrd("KV", s(sT), 3 << 19, 1024)

    P = Pipe(A, opt.look)
    ring = [0]

    def ring_alloc(n):
        if ring[0] + n > RING_SZ:
            ring[0] = 0
        o = ring[0]
        ring[0] += n
        return o

    slot = {}

    def w_item(name, st, sr, nseg, mreg):
        o = ring_alloc(nseg * 4096)
        slot[(name, st)] = o
        units = []
        for g in range(nseg):
            u = []
            if g == 0:
                u.append(f"s_add_u32 {s(sOFF)}, {s(sTA + st // 4)}, {(st % 4) * 32 * 3072}")
                u.append(f"s_add_u32 m0, {s(mreg)}, {L_RING + o}")
            u.append(f"buffer_load_dwordx4 {v(vWS)}, {R(sr)}, {s(sOFF)} offen offset:{g * 1024} lds")
            units.append(u)
        return Item(f"{name}{st}", units, nseg * 4096, (L_RING + o, L_RING + o + nseg * 4096))

    def x_item(c):
        u0 = [f"s_lshl_b32 {s(sOFF)}, {s(sTI + c // 2)}, 8"]
        if c & 1:
            u0.append(f"s_add_u32 {s(sOFF)}, {s(sOFF)}, 128")
        u0 += [f"s_add_u32 m0, {s(sM2)}, {L_X + c * 8192}",
               f"buffer_load_dwordx4 {v(vX0)}, {R('X')}, {s(sOFF)} offen lds"]
        u1 = [f"buffer_load_dwordx4 {v(vX1)}, {R('X')}, {s(sOFF)} offen offset:1024 lds"]
        return Item(f"X{c}", [u0, u1], 8192, (L_X + c * 8192, L_X + (c + 1) * 8192))

    nx = 1 if opt.map == "row" else 2
    touch = []
    for q in range(nx):
        sh = f"s_lshl_b32 {s(sOFF)}, {s(sHG)}, 7" if nx == 1 else \
            f"s_and_b32 {s(sOFF)}, {s(sHG)}, 3\ns_lshl_b32 {s(sOFF)}, {s(sOFF)}, 8"
        touch.append([sh, "s_mov_b64 exec, 0xffff\n"
                      f"buffer_load_dword {v(vDUM)}, {v(vPRE)}, {R('X')}, {s(sOFF)} offen offset:{q * 128}\n"
                      "s_mov_b64 exec, -1"])
    P.add(Item("XT", touch, 8192 * nx))
    for st in range(4):
        P.add(w_item("KV", st, "KV", 2, sM2))
    P.add(Item("G", [[f"s_add_u32 m0, {s(sM1)}, {L_G}", f"buffer_load_dwordx4 {v(vGS)}, {R('G')}, 0 offen lds"]],
               1024, (L_G, L_G + 4096)))
    for c in range(8):
        P.add(x_item(c))
        for st in (2 * c, 2 * c + 1):
            if st >= 4:
                P.add(w_item("KV", st, "KV", 2, sM2))
    for st in range(16):
        P.add(w_item("Q", st, "Q", 1, sM1))
    xh = []
    for q in range(2):
        xh.append([f"s_add_u32 {s(sOFF)}, {s(sW)}, {s(sJ)}", f"s_and_b32 {s(sOFF)}, {s(sOFF)}, 3",
                   f"s_lshl_b32 {s(sOFF)}, {s(sOFF)}, 8", f"s_add_u32 {s(sOFF)}, {s(sOFF)}, {q * 128}",
                   f"s_add_u32 m0, {s(sM4)}, {L_XH + q * 2048}",
                   f"buffer_load_dwordx4 {v(vH0)}, {R('XH')}, {s(sOFF)} offen lds"])
        xh.append([f"buffer_load_dwordx4 {v(vH1)}, {R('XH')}, {s(sOFF)} offen offset:1024 lds"])
    P.add(Item("XH", xh, 16384, (L_XH, L_XH + 16384)))
    P.add(Item("BT", [[f"s_lshl_b32 {s(sOFF)}, {s(sRB)}, 8", "s_mov_b64 exec, 15\n"
                       f"buffer_load_dword {v(vDUM)}, {v(vPRE)}, {R('WS')}, {s(sOFF)} offen\ns_mov_b64 exec, -1"]], 512))
    P.by["BT"].hold = True
    for st in range(16):
        P.add(w_item("B", st, "B", 3, sM3))
    P.add(Item("AN", [[f"s_lshl_b32 {s(sOFF)}, {s(sRB)}, 7", f"s_add_u32 {s(sOFF)}, {s(sOFF)}, {WS_AN}",
                       "s_mov_b64 exec, 0xff\n"
                       f"buffer_load_dwordx2 {v(vX0, 2)}, {v(vGS)}, {R('WS')}, {s(sOFF)} offen sc1\n"
                       "s_mov_b64 exec, -1"]], 128)).hold = True
    aK = lambda ht: 12 * (7 - ht)
    aV = lambda ht, p: 12 * (7 - ht) + 4 + 4 * p
    for ht in range(7, -1, -1):
        q, b = ht >> 1, ht & 1
        it = P.add(Item(f"H{ht}", [
            [f"buffer_load_dwordx4 {a(aK(ht), 4)}, {v(vL16)}, {R('WS')}, {s(sTB + q)} offen offset:{b * 2048} sc1"],
            [f"s_mov_b64 exec, {s(sMV, 2)}\n"
             f"buffer_load_dwordx4 {a(aV(ht, 0), 4)}, {v(vVS)}, {R('WS')}, {s(sTB + q)} offen offset:{b * 2048 + 1024} sc1\n"
             f"buffer_load_dwordx4 {a(aV(ht, 1), 4)}, {v(vVS)}, {R('WS')}, {s(sTB + q)} offen offset:{b * 2048 + 1536} sc1\n"
             "s_mov_b64 exec, -1"]], 8192))
        it.hold = True

    def wo_item(name, sr, lbase, u):
        units = []
        for q in range(4):
            x = [f"s_add_u32 m0, {s(sM4)}, {lbase + u * 16384}"] if q == 0 else []
            x.append(f"buffer_load_dwordx4 {v(vOS + q)}, {R(sr)}, {s(sTA + u)} offen offset:{q * 1024} lds")
            units.append(x)
        return Item(f"{name}{u}", units, 16384, (lbase + u * 16384, lbase + (u + 1) * 16384))

    P.emit(P.force("KV3"))

    mksrd("G", None, 1024)
    P.emit(P.force("G"))
    e(f"""s_getpc_b64 {s(sP, 2)}
    L_pc:
    s_sub_u32 {s(sP)}, {s(sP)}, L_pc-{NAME}_kernel
    s_subb_u32 {s(sP + 1)}, {s(sP + 1)}, 0
    s_mov_b32 {s(sP + 2)}, L_codeend-{NAME}_kernel
    s_mov_b32 {s(sP + 3)}, 0x20000
    s_lshr_b32 {s(sT)}, s2, 3
    s_lshl_b32 {s(sT)}, {s(sT)}, 2
    s_add_u32 {s(sT)}, {s(sT)}, {s(sW)}
    s_mul_i32 {s(sT)}, {s(sT)}, {opt.codelines * 128}
    v_lshlrev_b32 {v(vT2)}, 7, {v(vL)}
    s_mov_b64 exec, {(1 << opt.codelines) - 1}
    buffer_load_dword {v(vDUM)}, {v(vT2)}, {s(sP, 4)}, {s(sT)} offen
    s_mov_b64 exec, -1""")
    P.emit(P.take(4, look=1 << 30))
    e(f"s_lshl_b32 {s(sT)}, {s(sHG)}, 7")
    mksrd("Q", s(sT), 3 << 19)
    e(f"s_lshl_b32 {s(sT)}, {s(sHB)}, 7")
    mksrd("B", s(sT), 3 << 19)
    e(f"s_lshl_b32 {s(sT)}, {s(sCG)}, 7")
    mksrd("WOA", s(sT), 1 << 19)
    mksrd("WOB", s(sT), 1 << 19)
    e(f"s_lshl_b32 {s(sOFF)}, {s(sRB)}, 16\ns_add_u32 {s(sT)}, {s(sT)}, {s(sOFF)}")
    mksrd("OUT", s(sT), 2 << 20)
    e(f"s_sub_u32 {s(sT)}, {s(sOFF)}, 16384\ns_max_i32 {s(sT)}, {s(sT)}, 0")
    mksrd("XH", s(sT), 2 << 20)
    mksrd("WS", None, WS_SIZE)
    mksrd("DBG", None, 256)
    vm0, sm0 = A.vm, A.smem_open
    e(f"""s_or_b32 {s(sT)}, {s(sW)}, s2
    s_cbranch_scc1 L_notag
    s_memrealtime {s(sP, 2)}
    v_mov_b32 {v(vT2)}, 0
    s_waitcnt lgkmcnt(0)
    v_mov_b32 {v(base + 4)}, {s(sP)}
    v_mov_b32 {v(base + 5)}, {s(sP + 1)}
    s_mov_b64 exec, 1
    buffer_store_dwordx2 {v(base + 4, 2)}, {v(vT2)}, {R('DBG')}, 0 offen sc1
    s_mov_b64 exec, -1
    L_notag:""")
    A.vm, A.smem_open = vm0, sm0

    e(f"""s_lshl_b32 {s(sHD)}, {s(sHG)}, 2
    s_add_u32 {s(sHD)}, {s(sHD)}, {s(sW)}
    s_lshl_b32 {s(sT)}, {s(sRB)}, 5
    s_add_u32 {s(sT)}, {s(sT)}, {s(sHD)}
    s_lshl_b32 {s(sKVO)}, {s(sT)}, 12
    s_lshl_b32 {s(sF1)}, {s(sT)}, 7
    s_add_u32 {s(sF1)}, {s(sF1)}, {WS_F1}
    s_mov_b32 {s(sMV)}, 0xffff
    s_mov_b32 {s(sMV + 1)}, 0xffff""")
    for q in range(4):
        e(f"""s_sub_u32 {s(sTB + q)}, {s(sKVO)}, {(4 - q) * 131072}
        s_cmp_ge_u32 {s(sRB)}, {4 - q}
        s_cselect_b32 {s(sTB + q)}, {s(sTB + q)}, {OOB}
        s_cselect_b32 {s(sTC + q)}, {ONES}, 0""")
    e(f"""s_lshl_b32 {s(sT)}, {s(sRB)}, 16
    s_lshr_b32 {s(sT2)}, {s(sHD)}, 1
    s_lshl_b32 {s(sT2)}, {s(sT2)}, 10
    s_add_u32 {s(sOAW)}, {s(sT)}, {s(sT2)}
    s_add_u32 {s(sOAW)}, {s(sOAW)}, {WS_OA}
    s_lshl_b32 {s(sT2)}, {s(sHB)}, 2
    s_add_u32 {s(sHB)}, {s(sT2)}, {s(sW)}
    s_lshr_b32 {s(sT2)}, {s(sHB)}, 1
    s_lshl_b32 {s(sT2)}, {s(sT2)}, 10
    s_add_u32 {s(sOBW)}, {s(sT)}, {s(sT2)}
    s_add_u32 {s(sOBW)}, {s(sOBW)}, {WS_OB}""")
    g_, r_, c_, n_ = base, base + 1, base + 2, base + 3
    e(f"""v_lshrrev_b32 {v(g_)}, 4, {v(vL)}
    v_bfe_u32 {v(r_)}, {v(vL)}, 2, 2
    v_and_b32 {v(c_)}, 3, {v(vL)}
    v_and_b32 {v(n_)}, 15, {v(vL)}
    v_bfe_u32 {v(vT1)}, {v(vL)}, 3, 2
    v_xor_b32 {v(vT2)}, {v(vT1)}, {v(vT0)}
    v_lshlrev_b32 {v(vT2)}, 5, {v(vT2)}
    v_lshl_add_u32 {v(vT2)}, {v(c_)}, 3, {v(vT2)}
    v_lshl_add_u32 {v(vT2)}, {v(r_)}, 7, {v(vT2)}
    v_add_u32 {v(vT2)}, {L_RING}, {v(vT2)}
    v_lshl_add_u32 {v(vRQ)}, {v(g_)}, 10, {v(vT2)}
    v_lshl_add_u32 {v(vRKV)}, {v(g_)}, 11, {v(vT2)}
    v_lshl_add_u32 {v(vRB)}, {v(g_)}, 10, {v(vRKV)}
    v_lshrrev_b32 {v(vT2)}, 1, {v(n_)}
    v_xor_b32 {v(vT2)}, {v(vT2)}, {v(g_)}
    v_lshlrev_b32 {v(vT2)}, 4, {v(vT2)}
    v_lshl_add_u32 {v(vRX0)}, {v(n_)}, 7, {v(vT2)}
    v_xor_b32 {v(vRX1)}, 64, {v(vRX0)}
    v_add_u32 {v(vRH0)}, {L_XH}, {v(vRX0)}
    v_add_u32 {v(vRH1)}, {L_XH}, {v(vRX1)}
    v_lshlrev_b32 {v(vRG)}, 4, {v(g_)}
    v_lshl_add_u32 {v(vRG)}, {v(vT0)}, 10, {v(vRG)}
    v_add_u32 {v(vRG)}, {L_G}, {v(vRG)}""")
    e(f"""v_lshrrev_b32 {v(vT1)}, 3, {v(vL)}
    v_lshlrev_b32 {v(vT1)}, 12, {v(vT1)}
    v_lshl_add_u32 {v(vT1)}, {v(vT0)}, 15, {v(vT1)}
    v_and_b32 {v(vT2)}, 7, {v(vL)}""")
    for q in range(4):
        e(f"v_xor_b32 {v(vT3)}, {2 * q}, {v(vT2)}\nv_lshl_add_u32 {v(vOS + q)}, {v(vT3)}, 4, {v(vT1)}")
    e(f"""v_lshrrev_b32 {v(vT1)}, 1, {v(g_)}
    v_lshlrev_b32 {v(vT1)}, 2, {v(vT1)}
    v_and_or_b32 {v(vT1)}, {v(g_)}, 1, {v(vT1)}
    v_lshlrev_b32 {v(vT1)}, 7, {v(vT1)}
    v_lshl_add_u32 {v(vT1)}, {v(r_)}, 10, {v(vT1)}
    v_lshl_add_u32 {v(vT1)}, {v(c_)}, 3, {v(vT1)}""")
    for q in range(4):
        e(f"v_xor_b32 {v(vT3)}, {q}, {v(r_)}\nv_lshl_add_u32 {v(vRO + q)}, {v(vT3)}, 5, {v(vT1)}")
    e(f"""v_lshrrev_b32 {v(vT1)}, 5, {v(vL)}
    v_lshlrev_b32 {v(vT2)}, 4, {v(n_)}
    v_lshl_add_u32 {v(vVS)}, {v(vT1)}, 8, {v(vT2)}
    v_and_b32 {v(vT3)}, 1, {v(vT0)}
    v_lshl_add_u32 {v(vT2)}, {v(vT3)}, 9, {v(vT2)}
    v_and_b32 {v(vOUT)}, 1, {v(g_)}
    v_lshl_add_u32 {v(vOA)}, {v(vT1)}, 8, {v(vT2)}
    v_lshl_add_u32 {v(vOA)}, {v(vOUT)}, 14, {v(vOA)}
    v_lshl_add_u32 {v(vOB)}, {v(vOUT)}, 8, {v(vT2)}
    v_lshl_add_u32 {v(vOB)}, {v(vT1)}, 14, {v(vOB)}
    v_lshlrev_b32 {v(vOUT)}, 5, {v(vOUT)}
    v_lshl_add_u32 {v(vOUT)}, {v(vT1)}, 4, {v(vOUT)}
    v_lshl_add_u32 {v(vT3)}, {v(n_)}, 1, {v(vT3)}
    v_lshrrev_b32 {v(vT2)}, 1, {v(vT0)}
    v_lshl_add_u32 {v(vT3)}, {v(vT2)}, 5, {v(vT3)}
    v_lshl_add_u32 {v(vOUT)}, {v(vT3)}, 10, {v(vOUT)}
    v_mov_b32 {v(vNINF)}, {NINF}""")
    e(f"""v_and_b32 {v(vT2)}, 1, {v(g_)}
    v_lshl_add_u32 {v(vT2)}, {v(n_)}, 1, {v(vT2)}
    v_lshlrev_b32 {v(vT1)}, 3, {v(vT1)}
    v_sub_u32 {v(vT2)}, {v(vT2)}, {v(vT1)}""")
    for r in range(16):
        cr = 16 * ((r >> 2) & 1) + 2 * (r & 3) + (r >> 3)
        e(f"""v_cmp_le_i32 {s(sMK, 2)}, {cr}, {v(vT2)}
        v_cndmask_b32 {v(vMD + r)}, {v(vNINF)}, 0, {s(sMK, 2)}
        v_cndmask_b32 {v(vMF + r)}, 0, {v(vNINF)}, {s(sMK, 2)}""")
    e(f"""v_lshlrev_b32 {v(vT1)}, 2, {v(g_)}
    v_sub_u32 {v(vT2)}, {v(n_)}, {v(vT1)}
    v_add_u32 {v(vT3)}, {v(vT2)}, {v(n_)}
    s_cmp_eq_u32 {s(sRB)}, 0
    s_cselect_b32 {s(sT)}, 64, 0
    v_add_u32 {v(vT3)}, {s(sT)}, {v(vT3)}""")
    for r in range(4):
        e(f"""v_subrev_u32 {v(vT1)}, {r}, {v(vT2)}
        v_cmp_ge_u32 {s(sMK, 2)}, 7, {v(vT1)}
        v_cndmask_b32 {v(vMB + r)}, {v(vNINF)}, 0, {s(sMK, 2)}
        v_cmp_ge_i32 {s(sMK, 2)}, -9, {v(vT1)}
        v_cndmask_b32 {v(vMB + 4 + r)}, {v(vNINF)}, 0, {s(sMK, 2)}""")
        p = r & 1
        e(f"""v_cmp_ge_i32 {s(sMK, 2)}, {r - p - 2}, {v(vT3)}
        v_cndmask_b32 {v(vMB + 8 + 4 * p + r)}, {v(vNINF)}, 0, {s(sMK, 2)}
        v_mov_b32 {v(vMB + 8 + 4 * (1 - p) + r)}, {v(vNINF)}""")
    e(f"""v_and_b32 {v(vT1)}, 1, {v(vL)}
    v_lshlrev_b32 {v(vT1)}, 7, {v(vT1)}
    v_bfe_u32 {v(vT2)}, {v(vL)}, 1, 1
    v_lshl_add_u32 {v(vT1)}, {v(vT2)}, 18, {v(vT1)}
    v_add_u32 {v(vPRE)}, {WS_FB}, {v(vT1)}""")
    P.by["BT"].hold = False

    MF16 = "v_mfma_f32_16x16x32_bf16"
    MF16K = "v_mfma_f32_16x16x16_bf16"
    MF32 = "v_mfma_f32_32x32x16_bf16"
    ax = lambda st, t: a(16 * st + 4 * t, 4)

    def trread(dst, addr, off):
        return [f"ds_read_b64_tr_b16 {v(dst, 2)}, {v(addr)} offset:{off}",
                f"ds_read_b64_tr_b16 {v(dst + 2, 2)}, {v(addr)} offset:{off + 512}"]

    V.next = base
    cK = V.get(16, 4)
    fW = V.get(24, 4)
    cB = V.get(56, 4)
    cV, cZ = cB, cB + 16
    fB = V.get(32, 4)

    def kv_reads(st):
        f = fW + 12 * (st & 1)
        o = slot[("KV", st)]
        rd = trread(f, vRKV, o) + [f"ds_read_b128 {ax(st, 0)}, {v(vRX1 if st & 1 else vRX0)} offset:{(st >> 1) * 8192}"]
        rd += trread(f + 4, vRKV, o + 1024)
        rd += [f"ds_read_b128 {ax(st, t)}, {v(vRX1 if st & 1 else vRX0)} offset:{(st >> 1) * 8192 + t * 2048}"
               for t in range(1, 4)]
        rd += [f"ds_read_b128 {v(f + 8, 4)}, {v(vRG)} offset:{st * 64}"]
        P.read(f"KV{st}")
        if st & 1:
            P.read(f"X{st >> 1}")
        return rd

    P.top(["KV0", "G", "X0"])
    stamp("first")
    P.emit(kv_reads(0) + P.take(6))
    for st in range(16):
        P.top([f"KV{st + 1}", f"X{(st + 1) >> 1}"] if st < 15 else [])
        f = fW + 12 * (st & 1)
        cc = lambda r: v(r, 4) if st else "0"
        mf = []
        for t in range(4):
            mf.append(f"{MF16} {v(cK + 4 * t, 4)}, {v(f, 4)}, {ax(st, t)}, {cc(cK + 4 * t)}")
        for t in range(4):
            mf.append(f"{MF16} {v(cV + 4 * t, 4)}, {ax(st, t)}, {v(f + 4, 4)}, {cc(cV + 4 * t)}")
        for t in range(4):
            mf.append(f"{MF16} {v(cZ + 4 * t, 4)}, {v(f + 8, 4)}, {ax(st, t)}, {cc(cZ + 4 * t)}")
        rd = kv_reads(st + 1) if st < 15 else []
        P.emit(weave(mf, rd + P.take(opt.maxu), per_gap=1))
    stamp("kv")
    e(f"s_load_dwordx2 {s(sNON, 2)}, {s(srd['DBG'], 2)}, 0")
    for b in range(2):
        for p in range(2):
            t = 2 * b + p
            e(f"v_cvt_pk_bf16_f32 {v(vKO + 4 * b + 2 * p)}, {v(cK + 4 * t)}, {v(cK + 4 * t + 1)}\n"
              f"v_cvt_pk_bf16_f32 {v(vKO + 4 * b + 2 * p + 1)}, {v(cK + 4 * t + 2)}, {v(cK + 4 * t + 3)}")
    for t in range(4):
        e(f"v_cvt_pk_bf16_f32 {v(vVO + 4 * t)}, {v(cV + 4 * t)}, {v(cV + 4 * t + 1)}\n"
          f"v_cvt_pk_bf16_f32 {v(vVO + 4 * t + 1)}, {v(cV + 4 * t + 2)}, {v(cV + 4 * t + 3)}\n"
          f"v_mov_b32 {v(vVO + 4 * t + 2)}, {ONES}\nv_mov_b32 {v(vVO + 4 * t + 3)}, {ONES}")
    for b in range(2):
        e(f"v_permlane16_swap_b32 {v(vKO + 4 * b)}, {v(vKO + 4 * b + 2)}\n"
          f"v_permlane16_swap_b32 {v(vKO + 4 * b + 1)}, {v(vKO + 4 * b + 3)}")
    for b in range(2):
        e(f"buffer_store_dwordx4 {v(vKO + 4 * b, 4)}, {v(vL16)}, {R('WS')}, {s(sKVO)} offen offset:{b * 2048} sc1")
    for sw in ("16", "32"):
        for t in range(4):
            e(f"v_permlane{sw}_swap_b32 {v(vVO + 4 * t)}, {v(vVO + 4 * t + 2)}\n"
              f"v_permlane{sw}_swap_b32 {v(vVO + 4 * t + 1)}, {v(vVO + 4 * t + 3)}")
    e(f"s_mov_b64 exec, {s(sMV, 2)}")
    for t in range(4):
        tokKV = e(f"buffer_store_dwordx4 {v(vVO + 4 * t, 4)}, {v(vVS)}, {R('WS')}, {s(sKVO)} offen "
                  f"offset:{(t >> 1) * 2048 + 1024 + (t & 1) * 512} sc1")
    e("s_mov_b64 exec, -1")
    e(f"s_mov_b32 {s(sT)}, {NLOG2E}")
    for t in range(4):
        e(f"v_mul_f32 {v(cZ + 4 * t)}, {s(sT)}, {v(cZ + 4 * t)}")
    for t in range(4):
        e(f"v_exp_f32 {v(cZ + 4 * t)}, {v(cZ + 4 * t)}")
    for t in range(4):
        e(f"v_add_f32 {v(cZ + 4 * t)}, 1.0, {v(cZ + 4 * t)}")
    for t in range(4):
        e(f"v_rcp_f32 {v(cZ + 4 * t)}, {v(cZ + 4 * t)}")
    e(f"s_not_b64 {s(sMK, 2)}, {s(sMV, 2)}")
    for t in range(4):
        e(f"v_sub_f32 {v(vGB + t)}, 1.0, {v(cZ + 4 * t)}")
    for b in range(2):
        e(f"v_cndmask_b32 {v(vGA + b)}, {v(cZ + 8 * b)}, {v(cZ + 8 * b + 4)}, {s(sMK, 2)}")

    cQ = cK

    def b_reads(st):
        f = fB + 16 * (st & 1)
        o = slot[("B", st)]
        rd = trread(f + 4, vRB, o + 1024) + \
            [f"ds_read_b128 {v(f + 12, 4)}, {v(vRH1 if st & 1 else vRH0)} offset:{(st >> 1) * 2048}"] + \
            trread(f + 8, vRB, o + 2048) + trread(f, vRB, o)
        P.read(f"B{st}")
        return rd

    P.top(["Q0", "Q1"])
    P.emit(trread(fW, vRQ, slot[("Q", 0)]) + trread(fW + 4, vRQ, slot[("Q", 1)]) + P.take(opt.maxu))
    P.read("Q0", "Q1")
    for ss in range(8):
        P.top([f"Q{2 * ss + 2}", f"Q{2 * ss + 3}"] if ss < 7 else ["XH", "B0"])
        f = fW + 12 * (ss & 1)
        mf = []
        for d in range(2):
            st = 2 * ss + d
            for t in range(4):
                mf.append(f"{MF16} {v(cQ + 4 * t, 4)}, {v(f + 4 * d, 4)}, {ax(st, t)}, "
                          f"{v(cQ + 4 * t, 4) if st else '0'}")
        if ss < 7:
            fn = fW + 12 * ((ss + 1) & 1)
            rd = trread(fn, vRQ, slot[("Q", 2 * ss + 2)]) + trread(fn + 4, vRQ, slot[("Q", 2 * ss + 3)])
            P.read(f"Q{2 * ss + 2}", f"Q{2 * ss + 3}")
        else:
            rd = b_reads(0)
        P.emit(weave(mf, rd + P.take(opt.maxu), per_gap=1))
        if ss == 0:
            e(f"""s_mov_b32 {s(sCNT)}, 0
            L_non:
            s_or_b32 {s(sT)}, {s(sNON)}, {s(sNON + 1)}
            s_cbranch_scc1 L_nonok
            s_sleep 32
            s_load_dwordx2 {s(sNON, 2)}, {s(srd['DBG'], 2)}, 0 glc
            s_add_u32 {s(sCNT)}, {s(sCNT)}, 1
            s_cmp_lt_u32 {s(sCNT)}, {SPIN_MAX}
            s_waitcnt lgkmcnt(0)
            s_cbranch_scc1 L_non
            L_nonok:
            v_mov_b32 {v(vNON)}, {s(sNON)}
            v_mov_b32 {v(vNON + 1)}, {s(sNON + 1)}
            v_mov_b32 {v(vT1)}, 0""")
            A.smem_open = False
        if ss == opt.flagss:
            A.wait(vm=tokKV)
            e(f"""s_mov_b64 exec, 1
            buffer_store_dwordx2 {v(vNON, 2)}, {v(vT1)}, {R('WS')}, {s(sF1)} offen sc1
            s_mov_b64 exec, -1""")
        if ss == 1:
            e(f"""s_getreg_b32 {s(sT)}, hwreg(HW_REG_XCC_ID, 0, 4)
            s_add_u32 {s(sT)}, {s(sT)}, {s(sNON)}
            v_mov_b32 {v(vAN)}, {s(sT)}
            v_mov_b32 {v(vAN + 1)}, {s(sNON + 1)}
            v_lshlrev_b32 {v(vGS)}, 3, {v(vL)}
            s_lshl_b32 {s(sT)}, {s(sRB)}, 4
            s_add_u32 {s(sT)}, {s(sT)}, {s(sHG)}
            s_lshl_b32 {s(sT)}, {s(sT)}, 3
            s_add_u32 {s(sT)}, {s(sT)}, {WS_AN}
            s_cmp_eq_u32 {s(sW)}, 0
            s_cselect_b64 exec, 1, 0
            buffer_store_dwordx2 {v(vAN, 2)}, {v(vT1)}, {R('WS')}, {s(sT)} offen sc1
            s_mov_b64 exec, -1""")
    stamp("q")
    e(f"s_mov_b32 {s(sT)}, {C_SCALE}")
    qpost = []
    for i in range(16):
        qpost.append(f"v_mul_f32 {v(cQ + i)}, {s(sT)}, {v(cQ + i)}")
    for b in range(2):
        for p in range(2):
            t = 2 * b + p
            qpost.append(f"v_cvt_pk_bf16_f32 {v(vQA + 4 * b + 2 * p)}, {v(cQ + 4 * t)}, {v(cQ + 4 * t + 1)}")
            qpost.append(f"v_cvt_pk_bf16_f32 {v(vQA + 4 * b + 2 * p + 1)}, {v(cQ + 4 * t + 2)}, {v(cQ + 4 * t + 3)}")
    for b in range(2):
        qpost.append(f"v_permlane16_swap_b32 {v(vQA + 4 * b)}, {v(vQA + 4 * b + 2)}")
        qpost.append(f"v_permlane16_swap_b32 {v(vQA + 4 * b + 1)}, {v(vQA + 4 * b + 3)}")
    P.emit(qpost)

    bq, bk, bv = cB, cB + 16, cB + 36
    h1 = lambda: "\n".join(f"s_buffer_load_dwordx2 {s(sP + 2 * q, 2)}, {R('WS')}, {s(sTI + q)} glc" for q in range(4))
    for st in range(16):
        P.top([f"B{st + 1}"] if st < 15 else [])
        if st == opt.pollst + 1:
            e(f"s_mov_b32 {s(sCNT)}, 0\nL_h1:")
            for q in range(4):
                e(f"s_xor_b64 {s(sP + 2 * q, 2)}, {s(sP + 2 * q, 2)}, {s(sNON, 2)}")
            e(f"""s_or_b64 {s(sP, 2)}, {s(sP, 2)}, {s(sP + 2, 2)}
            s_or_b64 {s(sP + 4, 2)}, {s(sP + 4, 2)}, {s(sP + 6, 2)}
            s_or_b64 {s(sP, 2)}, {s(sP, 2)}, {s(sP + 4, 2)}
            s_cbranch_scc0 L_h1ok
            {h1()}
            s_add_u32 {s(sCNT)}, {s(sCNT)}, 1
            s_cmp_lt_u32 {s(sCNT)}, {SPIN_MAX}
            s_waitcnt lgkmcnt(0)
            s_cbranch_scc1 L_h1
            L_h1ok:""")
            A.smem_open = False
            P.by["AN"].hold = False
            for ht in range(8):
                P.by[f"H{ht}"].hold = False
            stamp("h1flag")
        f = fB + 16 * (st & 1)
        cc = lambda r: v(r, 4) if st else "0"
        mf = [f"{MF16} {v(bk + 16, 4)}, {v(f + 4, 4)}, {v(f + 12, 4)}, {cc(bk + 16)}",
              f"{MF16} {v(bv + 16, 4)}, {v(f + 12, 4)}, {v(f + 8, 4)}, {cc(bv + 16)}"]
        for t in range(4):
            mf.append(f"{MF16} {v(bk + 4 * t, 4)}, {v(f + 4, 4)}, {ax(st, t)}, {cc(bk + 4 * t)}")
        for t in range(4):
            mf.append(f"{MF16} {v(bv + 4 * t, 4)}, {ax(st, t)}, {v(f + 8, 4)}, {cc(bv + 4 * t)}")
        for t in range(4):
            mf.append(f"{MF16} {v(bq + 4 * t, 4)}, {v(f, 4)}, {ax(st, t)}, {cc(bq + 4 * t)}")
        fill = b_reads(st + 1) if st < 15 else []
        if st == 0:
            for q in range(4):
                fill += [f"s_sub_u32 {s(sP + q)}, {s(sF1)}, {(4 - q) * 4096}", f"s_cmp_ge_u32 {s(sRB)}, {4 - q}",
                         f"s_cselect_b32 {s(sP + q)}, {s(sP + q)}, {s(sF1)}"]
            for q in range(4):
                fill += [f"s_lshl_b32 {s(sP + 4 + q)}, {s(sTI + q)}, 12", f"s_mov_b32 {s(sTI + q)}, {s(sP + q)}"]
            fill += [f"s_mov_b32 {s(sM1)}, {s(sP + 4)}", f"s_mov_b32 {s(sM2)}, {s(sP + 5)}",
                     f"s_mov_b32 {s(sHG)}, {s(sP + 6)}", f"s_mov_b32 {s(sJ)}, {s(sP + 7)}"]
        if 6 <= st <= opt.pollst:
            per = -(-64 // (opt.pollst - 5))
            allw = [(ht, p, i) for ht in range(7, -1, -1) for p in range(2) for i in range(4)]
            for ht, p, i in allw[(st - 6) * per:(st - 5) * per]:
                fill.append(f"v_accvgpr_write_b32 {a(aV(ht, p) + i)}, {s(sTC + (ht >> 1))}")
        if st == opt.pollst:
            fill.append(h1())
        P.emit(weave(mf, fill + P.take(opt.maxu), per_gap=1))
    P.emit(P.force("H0"))
    stamp("bgemm")
    idx4k = (sM1, sM2, sHG, sJ)
    for u in range(4):
        e(f"s_lshl_b32 {s(sTA + u)}, {s(idx4k[u])}, 5")
    e(f"s_lshl_b32 {s(sT)}, {s(sRB)}, 16\ns_lshl_b32 {s(sT2)}, {s(sW)}, 14\ns_add_u32 {s(sT)}, {s(sT)}, {s(sT2)}")
    for u in range(4):
        e(f"s_add_u32 {s(sTB + u)}, {s(sT)}, {s(idx4k[u])}\ns_add_u32 {s(sTC + u)}, {s(sTB + u)}, {WS_OB}\n"
          f"s_add_u32 {s(sTB + u)}, {s(sTB + u)}, {WS_OA}")

    V.next = base
    uQ, uK, uV = V.get(8, 4), V.get(10, 2), V.get(12, 2)
    uP = cB + 36
    uM = V.get(8, 2)
    assert V.next <= cB
    uS = fB
    e(f"s_mov_b32 {s(sT)}, {C_SCALE}")
    for t in range(5):
        e(f"v_cvt_pk_bf16_f32 {v(uK + 2 * t)}, {v(bk + 4 * t)}, {v(bk + 4 * t + 1)}\n"
          f"v_cvt_pk_bf16_f32 {v(uK + 2 * t + 1)}, {v(bk + 4 * t + 2)}, {v(bk + 4 * t + 3)}")
    for p in range(2):
        for i, t in enumerate((4, p, 2 + p)):
            e(f"v_cvt_pk_bf16_f32 {v(uV + 6 * p + 2 * i)}, {v(bv + 4 * t)}, {v(bv + 4 * t + 1)}\n"
              f"v_cvt_pk_bf16_f32 {v(uV + 6 * p + 2 * i + 1)}, {v(bv + 4 * t + 2)}, {v(bv + 4 * t + 3)}")
    for t in range(4):
        for i in range(4):
            e(f"v_mul_f32 {v(bq + 4 * t + i)}, {s(sT)}, {v(bq + 4 * t + i)}")
        e(f"v_cvt_pk_bf16_f32 {v(uQ + 2 * t)}, {v(bq + 4 * t)}, {v(bq + 4 * t + 1)}\n"
          f"v_cvt_pk_bf16_f32 {v(uQ + 2 * t + 1)}, {v(bq + 4 * t + 2)}, {v(bq + 4 * t + 3)}")
    for t in range(4):
        b, p = t >> 1, t & 1
        kp, mp = (4, vMB + 8 + 4 * p) if b == 0 else (p, vMB + 4)
        e(f"{MF16K} {v(uS + 8 * t, 4)}, {v(uK + 2 * kp, 2)}, {v(uQ + 2 * t, 2)}, {v(mp, 4)}\n"
          f"{MF16K} {v(uS + 8 * t + 4, 4)}, {v(uK + 2 * t, 2)}, {v(uQ + 2 * t, 2)}, {v(vMB, 4)}")
    for t in range(4):
        z = uS + 8 * t
        e(f"v_max3_f32 {v(uM + t)}, {v(z)}, {v(z + 1)}, {v(z + 2)}\n"
          f"v_max3_f32 {v(uM + 4 + t)}, {v(z + 3)}, {v(z + 4)}, {v(z + 5)}\n"
          f"v_max3_f32 {v(uM + t)}, {v(uM + t)}, {v(z + 6)}, {v(z + 7)}\n"
          f"v_max_f32 {v(uM + t)}, {v(uM + t)}, {v(uM + 4 + t)}")
    for sw in ("16", "32"):
        for t in range(4):
            e(f"v_mov_b32 {v(uM + 4 + t)}, {v(uM + t)}")
        for t in range(4):
            e(f"v_permlane{sw}_swap_b32 {v(uM + t)}, {v(uM + 4 + t)}")
        for t in range(4):
            e(f"v_max_f32 {v(uM + t)}, {v(uM + t)}, {v(uM + 4 + t)}")
    uO, uL, vONE = cB, cB + 16, cB + 32
    for q in range(4):
        e(f"v_mov_b32 {v(vONE + q)}, {ONES}")
    for t in range(4):
        z = uS + 8 * t
        for i in range(8):
            e(f"v_sub_f32 {v(z + i)}, {v(z + i)}, {v(uM + t)}")
        for i in range(8):
            e(f"v_exp_f32 {v(z + i)}, {v(z + i)}")
        for i in range(4):
            e(f"v_cvt_pk_bf16_f32 {v(uP + 4 * t + i)}, {v(z + 2 * i)}, {v(z + 2 * i + 1)}")
        if t:
            b, p = (t - 1) >> 1, (t - 1) & 1
            e(f"{MF16} {v(uL + 4 * (t - 1), 4)}, {v(vONE, 4)}, {v(uP + 4 * (t - 1), 4)}, 0\n"
              f"{MF16} {v(uO + 4 * (t - 1), 4)}, {v(uV + 6 * p + 2 * b, 4)}, {v(uP + 4 * (t - 1), 4)}, 0")
    e(f"{MF16} {v(uL + 12, 4)}, {v(vONE, 4)}, {v(uP + 12, 4)}, 0\n"
      f"{MF16} {v(uO + 12, 4)}, {v(uV + 8, 4)}, {v(uP + 12, 4)}, 0")
    for t in range(4):
        e(f"v_rcp_f32 {v(uL + 4 * t)}, {v(uL + 4 * t)}")
    for t in range(4):
        e(f"v_mul_f32 {v(uL + 4 * t)}, {v(uL + 4 * t)}, {v(vGB + t)}")
    for t in range(4):
        for i in range(4):
            e(f"v_mul_f32 {v(uO + 4 * t + i)}, {v(uO + 4 * t + i)}, {v(uL + 4 * t)}")
        e(f"v_cvt_pk_bf16_f32 {v(uQ + 2 * t)}, {v(uO + 4 * t)}, {v(uO + 4 * t + 1)}\n"
          f"v_cvt_pk_bf16_f32 {v(uQ + 2 * t + 1)}, {v(uO + 4 * t + 2)}, {v(uO + 4 * t + 3)}")
    for b in range(2):
        e(f"v_permlane32_swap_b32 {v(uQ + 4 * b)}, {v(uQ + 4 * b + 2)}\n"
          f"v_permlane32_swap_b32 {v(uQ + 4 * b + 1)}, {v(uQ + 4 * b + 3)}")
    e(f"s_add_u32 {s(sT)}, {s(sOBW)}, 32768")
    e(f"buffer_store_dwordx4 {v(uQ, 4)}, {v(vOB)}, {R('WS')}, {s(sOBW)} offen sc1")
    tokOB = e(f"buffer_store_dwordx4 {v(uQ + 4, 4)}, {v(vOB)}, {R('WS')}, {s(sT)} offen sc1")
    stamp("battn")

    P.top([], barrier=True)
    aOB, aOA = 96, 160
    e(f"""v_and_b32 {v(vT1)}, 3, {v(vL)}
    v_lshlrev_b32 {v(vT1)}, 7, {v(vT1)}
    v_bfe_u32 {v(vT2)}, {v(vL)}, 2, 2
    v_lshl_add_u32 {v(vT1)}, {v(vT2)}, 14, {v(vT1)}
    v_and_b32 {v(vT2)}, 0x200, {v(vOA)}
    v_add_u32 {v(vPRE)}, {v(vT1)}, {v(vT2)}
    s_lshl_b32 {s(sM3)}, {s(sRB)}, 8
    s_lshl_b32 {s(sT)}, {s(sHB)}, 3
    s_add_u32 {s(sF1)}, {s(sM3)}, {s(sT)}
    s_add_u32 {s(sF1)}, {s(sF1)}, {WS_FB}
    s_lshl_b32 {s(sT)}, {s(sHD)}, 3
    s_add_u32 {s(sKVO)}, {s(sM3)}, {s(sT)}
    s_add_u32 {s(sKVO)}, {s(sKVO)}, {WS_FA}
    s_add_u32 {s(sM3)}, {s(sM3)}, {WS_FB}
    v_mov_b32 {v(vT1)}, 0""")
    P.add(Item("PT", [["s_mov_b64 exec, 0xffff\n"
                       f"buffer_load_dword {v(vDUM)}, {v(vPRE)}, {R('WS')}, {s(sOAW)} offen\ns_mov_b64 exec, -1"],
                      ["s_mov_b64 exec, 1\n"
                       f"buffer_load_dword {v(vDUM)}, {v(vOUT)}, {R('OUT')}, 0 offen\ns_mov_b64 exec, -1"]], 8192))
    for u in range(4):
        P.add(wo_item("WOB", "WOB", L_WOB, u))
    for u in range(4):
        P.add(wo_item("WOA", "WOA", L_WOA, u))
    for u in range(4):
        it = P.add(Item(f"OB{u}", [[f"buffer_load_dwordx4 {a(aOB + 16 * u + 4 * q, 4)}, {v(vL16)}, {R('WS')}, "
                                    f"{s(sTC + u)} offen offset:{q * 1024} sc1"] for q in range(4)], 16384))
        it.hold = True

    V.next = base
    vPL = V.get(2, 2)
    cS = V.get(32, 4)
    cP = V.get(16, 4)
    cO = V.get(32, 4)
    kop = lambda t: v(vKO + 4 * t[1], 4) if t[0] == "o" else a(aK(t[1]), 4)
    vop = lambda t, p: v(vVO + 8 * t[1] + 4 * p, 4) if t[0] == "o" else a(aV(t[1], p), 4)
    steps = [(("o", 0), 0, vMD), (("o", 1), 1, vMD), (("o", 0), 1, None)]
    for ht in range(7, 1, -1):
        steps += [(("h", ht), 0, None), (("h", ht), 1, None)]
    steps += [(("h", 1), 0, None), (("h", 1), 1, vMF), (("h", 0), 0, vMF)]

    def qk(n):
        t, q, m = steps[n]
        return f"{MF32} {v(cS + 16 * (n & 1), 16)}, {kop(t)}, {v(vQA + 4 * q, 4)}, {v(m, 16) if m else '0'}"

    seen = set()

    def pv(n, p):
        t, q, m = steps[n]
        c = v(cO + 16 * q, 16) if q in seen else "0"
        seen.add(q)
        return f"{MF32} {v(cO + 16 * q, 16)}, {vop(t, p)}, {v(cP + 8 * (n & 1) + 4 * p, 4)}, {c}"

    def flag_store(tag, soff):
        e(f"s_cmp_eq_u32 {s(sLOC)}, 8\ns_mov_b64 exec, 1\ns_cbranch_scc1 L_{tag}l")
        e(f"buffer_store_dwordx2 {v(vNON, 2)}, {v(vT1)}, {R('WS')}, {s(soff)} offen sc1\ns_branch L_{tag}j\nL_{tag}l:")
        A.vm -= 1
        e(f"buffer_store_dwordx2 {v(vNON, 2)}, {v(vT1)}, {R('WS')}, {s(soff)} offen\nL_{tag}j:\ns_mov_b64 exec, -1")

    def board_load(off):
        e("s_mov_b64 exec, 0xffffffff")
        t = e(f"buffer_load_dwordx2 {v(vPL, 2)}, {v(vGS)}, {R('WS')}, {s(sM3)} offen offset:0 sc1" if off == 0 else
              f"buffer_load_dwordx2 {v(vPL, 2)}, {v(vGS)}, {R('WS')}, {s(sOFF)} offen sc1")
        e("s_mov_b64 exec, -1")
        return t

    def board_check(tag, off, tok):
        A.wait(vm=tok)
        e(f"""s_mov_b32 {s(sCNT)}, 0
        L_{tag}:
        v_cmp_ne_u64 vcc, {v(vPL, 2)}, {v(vNON, 2)}
        s_nop 1
        s_cmp_eq_u32 vcc_lo, 0
        s_cbranch_scc1 L_{tag}ok""")
        vm0 = A.vm
        board_load(off)
        A.vm = vm0
        e(f"""s_add_u32 {s(sCNT)}, {s(sCNT)}, 1
        s_cmp_lt_u32 {s(sCNT)}, {SPIN_MAX}
        s_waitcnt vmcnt(0)
        s_cbranch_scc1 L_{tag}
        L_{tag}ok:""")

    e(qk(0))
    NS = len(steps)
    tokPB = None
    for n in range(NS):
        z, pp = cS + 16 * (n & 1), cP + 8 * (n & 1)
        if n + 1 < NS:
            t = steps[n + 1][0]
            if t[0] == "h":
                A.wait(vm=P.by[f"H{t[1]}"].tok)
                P.waited = max(P.waited, P.items.index(P.by[f"H{t[1]}"]))
                if t[1] == 7 and steps[n + 1][1] == 0:
                    stamp("halo7")
            e(qk(n + 1))
        if n == opt.obflag:
            A.wait(vm=tokOB)
            e(f"""v_cmp_eq_u64 vcc, {v(vX0, 2)}, {v(vAN, 2)}
            s_nop 1
            s_and_b32 {s(sLOC)}, vcc_lo, 0xff
            s_bcnt1_i32_b32 {s(sLOC)}, {s(sLOC)}""")
            flag_store("fb", sF1)
        if n == opt.obpoll:
            tokPB = board_load(0)
        if n == opt.obpoll + 2:
            board_check("pb", 0, tokPB)
            for u in range(4):
                P.by[f"OB{u}"].hold = False
        mem = P.take(opt.attu, look=1 << 30) if n >= opt.att0 else []
        groups = [[] for _ in range(8)]
        gi = 1
        cur = []
        for x in mem:
            cur.append(x)
            if isinstance(x, tuple):
                groups[gi % 8] += cur
                cur = []
                gi += 2 if opt.attu <= 4 else 1
        for i in range(8):
            e(f"v_exp_f32 {v(z + 2 * i)}, {v(z + 2 * i)}\nv_exp_f32 {v(z + 2 * i + 1)}, {v(z + 2 * i + 1)}")
            if i:
                e(f"v_cvt_pk_bf16_f32 {v(pp + i - 1)}, {v(z + 2 * i - 2)}, {v(z + 2 * i - 1)}")
            if n and i == 1:
                e(pv(n - 1, 1))
            if i == 6:
                e(pv(n, 0))
            P.emit(groups[i])
        e(f"v_cvt_pk_bf16_f32 {v(pp + 7)}, {v(z + 14)}, {v(z + 15)}")
    e(pv(NS - 1, 1))
    stamp("aattn")

    e(f"s_mov_b32 {s(sT)}, {L_LO}\ns_mov_b32 {s(sT2)}, {L_HI}")
    oP = cP

    def finish_q(q):
        o = cO + 16 * q
        return [f"v_rcp_f32 {v(o + 9)}, {v(o + 8)}", f"s_nop 0", f"v_mul_f32 {v(o + 9)}, {v(o + 9)}, {v(vGA + q)}"] + \
            [f"v_mul_f32 {v(o + i)}, {v(o + i)}, {v(o + 9)}" for i in range(8)] + \
            [f"v_cvt_pk_bf16_f32 {v(oP + 4 * q + i)}, {v(o + 2 * i)}, {v(o + 2 * i + 1)}" for i in range(4)]

    for q in (1, 0):
        o = cO + 16 * q
        e(f"""v_cmp_lt_f32 {s(sP, 2)}, {s(sT)}, {v(o + 8)}
        v_cmp_gt_f32 {s(sP + 2, 2)}, {s(sT2)}, {v(o + 8)}
        s_and_b64 {s(sP, 2)}, {s(sP, 2)}, {s(sP + 2, 2)}
        s_not_b64 {s(sP, 2)}, {s(sP, 2)}
        s_cbranch_scc1 L_slow{q}
        L_back{q}:""")
        P.emit(finish_q(q))
    e(f"s_add_u32 {s(sT)}, {s(sOAW)}, 32768\ns_cmp_eq_u32 {s(sLOC)}, 8\ns_cbranch_scc1 L_oal")
    e(f"buffer_store_dwordx4 {v(oP + 4, 4)}, {v(vOA)}, {R('WS')}, {s(sT)} offen sc1\n"
      f"buffer_store_dwordx4 {v(oP, 4)}, {v(vOA)}, {R('WS')}, {s(sOAW)} offen sc1\ns_branch L_oaj\nL_oal:")
    A.vm -= 2
    e(f"buffer_store_dwordx4 {v(oP + 4, 4)}, {v(vOA)}, {R('WS')}, {s(sT)} offen {opt.oast}")
    tokOA = e(f"buffer_store_dwordx4 {v(oP, 4)}, {v(vOA)}, {R('WS')}, {s(sOAW)} offen {opt.oast}")
    e("L_oaj:")
    P.emit(P.force("OB3"))

    V.next = cP + 16
    cD = V.get(16, 4)
    fO = V.get(48, 4)

    def wo_reads(st):
        f = fO + 16 * (st % 3)
        o = (st & 15) * 4096
        out = []
        for ct in range(4):
            out += [f"ds_read_b64_tr_b16 {v(f + 4 * ct, 2)}, {v(vRO + ct)} offset:{o}",
                    f"ds_read_b64_tr_b16 {v(f + 4 * ct + 2, 2)}, {v(vRO + ct)} offset:{o + 256}"]
        return out

    A.wait(vm=tokOA)
    flag_store("fa", sKVO)
    stamp("oapub")
    P.top(["WOA3"])
    e(f"s_add_u32 {s(sOFF)}, {s(sM3)}, {WS_FA - WS_FB}")
    ltok = {}

    def emit_reads(st):
        for x in wo_reads(st):
            ltok[st] = e(x)

    emit_reads(0)
    emit_reads(1)
    tokPA = None
    oatok = {}
    for st in range(32):
        if st == 14:
            for ct in range(4):
                e(f"v_add_u32 {v(vRO + ct)}, {L_WOA - L_WOB}, {v(vRO + ct)}")
        if st == opt.oapoll:
            tokPA = board_load(1)
        if st == min(opt.oapoll + opt.oagap, 16):
            board_check("pa", 1, tokPA)
            stamp("oaflag")
            for u in range(4):
                for q in range(4):
                    oatok[4 * u + q] = e(f"buffer_load_dwordx4 {a(aOA + 16 * u + 4 * q, 4)}, {v(vL16)}, {R('WS')}, "
                                         f"{s(sTB + u)} offen offset:{q * 1024} sc1")
        if st < 16:
            A.wait(vm=P.by[f"OB{st // 4}"].tok, lg=ltok[st])
            ob = a(aOB + 4 * st, 4)
        else:
            A.wait(vm=oatok[st - 16], lg=ltok[st])
            ob = a(aOA + 4 * (st - 16), 4)
        f = fO + 16 * (st % 3)
        rd = wo_reads(st + 2) if st + 2 < 32 else []
        for ct in range(4):
            e(f"{MF16} {v(cD + 4 * ct, 4)}, {v(f + 4 * ct, 4)}, {ob}, {v(cD + 4 * ct, 4) if st else '0'}")
            for x in rd[2 * ct:2 * ct + 2]:
                ltok[st + 2] = e(x)
    stamp("proj")
    for ct in range(4):
        e(f"v_cvt_pk_bf16_f32 {v(fO + 2 * ct)}, {v(cD + 4 * ct)}, {v(cD + 4 * ct + 1)}\n"
          f"v_cvt_pk_bf16_f32 {v(fO + 2 * ct + 1)}, {v(cD + 4 * ct + 2)}, {v(cD + 4 * ct + 3)}")
    for u in range(2):
        e(f"v_permlane16_swap_b32 {v(fO + 4 * u)}, {v(fO + 4 * u + 2)}\n"
          f"v_permlane16_swap_b32 {v(fO + 4 * u + 1)}, {v(fO + 4 * u + 3)}")
    for u in range(2):
        e(f"buffer_store_dwordx4 {v(fO + 4 * u, 4)}, {v(vOUT)}, {R('OUT')}, 0 offen offset:{64 * u} {opt.outst}")
    if opt.stamp:
        A.wait(vm="all")
        stamp("end")
        e(f"""s_lshl_b32 {s(sT)}, s2, 2
        s_add_u32 {s(sT)}, {s(sT)}, {s(sW)}
        s_lshl_b32 {s(sT)}, {s(sT)}, 8
        s_add_u32 {s(sT)}, {s(sT)}, {WS_STAMP}
        v_writelane_b32 {v(vSTAMP)}, {s(sLOC)}, 31
        v_lshlrev_b32 {v(vT1)}, 2, {v(vL)}
        buffer_store_dword {v(vSTAMP)}, {v(vT1)}, {R('WS')}, {s(sT)} offen""")
    e("L_end:\ns_endpgm")

    for q in (1, 0):
        mine = [(t, m) for (t, qq, m) in steps if qq == q]
        z, mx, o = cS, cS + 16, cO + 16 * q
        e(f"L_slow{q}:\ns_nop 15\nv_mov_b32 {v(mx)}, {v(vNINF)}")
        for ps in range(2):
            first = True
            for i, (t, m) in enumerate(mine):
                lab = f"L_sk{q}_{ps}_{i}"
                if t[0] == "h":
                    e(f"s_cmp_lt_u32 {s(sRB)}, {4 - (t[1] >> 1)}\ns_cbranch_scc1 {lab}")
                e(f"{MF32} {v(z, 16)}, {kop(t)}, {v(vQA + 4 * q, 4)}, {v(m, 16) if m else '0'}")
                if ps == 0:
                    for k in range(8):
                        e(f"v_max3_f32 {v(mx)}, {v(mx)}, {v(z + 2 * k)}, {v(z + 2 * k + 1)}")
                else:
                    for k in range(16):
                        e(f"v_sub_f32 {v(z + k)}, {v(z + k)}, {v(mx)}")
                    for k in range(16):
                        e(f"v_exp_f32 {v(z + k)}, {v(z + k)}")
                    for k in range(8):
                        e(f"v_cvt_pk_bf16_f32 {v(mx + 4 + k)}, {v(z + 2 * k)}, {v(z + 2 * k + 1)}")
                    for p in range(2):
                        e(f"{MF32} {v(o, 16)}, {vop(t, p)}, {v(mx + 4 + 4 * p, 4)}, "
                          f"{'0' if first and p == 0 else v(o, 16)}")
                first = False
                e(f"s_nop 15\n{lab}:")
            if ps == 0:
                e(f"v_mov_b32 {v(mx + 1)}, {v(mx)}\nv_permlane32_swap_b32 {v(mx)}, {v(mx + 1)}\n"
                  f"v_max_f32 {v(mx)}, {v(mx)}, {v(mx + 1)}")
        e(f"s_nop 15\ns_branch L_back{q}")
    e("L_codeend:")

    body, nops = A.finish()
    head = f"""; Fused gated mix of sliding-window attention (A) and dilated local attention (B).
; One workgroup per CU: 64 rows x 4 heads of each branch; K/V and attention outputs are handed
; @launch grid=(256,1,1) block=(256,1,1) lds={LDS_BYTES}
.amdgcn_target "amdgcn-amd-amdhsa--gfx950"
.text
.globl {NAME}_kernel
.p2align 8
.type {NAME}_kernel,@function
{NAME}_kernel:
"""
    tail = f""".section .rodata,"a"
.p2align 6
.amdhsa_kernel {NAME}_kernel
  .amdhsa_next_free_vgpr 512
  .amdhsa_next_free_sgpr 102
  .amdhsa_accum_offset 256
  .amdhsa_group_segment_fixed_size 0
  .amdhsa_kernarg_size 80
  .amdhsa_user_sgpr_count 2
  .amdhsa_user_sgpr_kernarg_segment_ptr 1
  .amdhsa_system_sgpr_workgroup_id_x 1
.end_amdhsa_kernel
"""
    info = dict(nops=nops, sgpr=S.high, vgpr=V.high, lines=body.count("\n"), stamps=stamps)
    return head + body + tail, info


def parser():
    ap = argparse.ArgumentParser()
    ap.add_argument("-o", default="cdna_kernels/" + NAME + ".s")
    ap.add_argument("--map", default="row")
    ap.add_argument("--xb", type=int, default=4)
    ap.add_argument("--xo", type=int, default=2)
    ap.add_argument("--look", type=int, default=36 * 1024)
    ap.add_argument("--maxu", type=int, default=6)
    ap.add_argument("--flagss", type=int, default=6)
    ap.add_argument("--pollst", type=int, default=10)
    ap.add_argument("--obflag", type=int, default=4)
    ap.add_argument("--obpoll", type=int, default=10)
    ap.add_argument("--att0", type=int, default=0)
    ap.add_argument("--attu", type=int, default=3)
    ap.add_argument("--oapoll", type=int, default=4)
    ap.add_argument("--oagap", type=int, default=6)
    ap.add_argument("--oast", default="")
    ap.add_argument("--outst", default="")
    ap.add_argument("--codelines", type=int, default=3)
    ap.add_argument("--stamp", type=int, default=0)
    return ap


if __name__ == "__main__":
    opt = parser().parse_args()
    txt, info = generate(opt)
    open(opt.o, "w").write(txt)
    print(info)
```
